```python
import torch

def _softmax(x, axis=-1):
    return torch.softmax(x, dim=axis)
def _gelu(x):
    return torch.nn.functional.gelu(x, approximate="tanh")
def _silu(x):
    return torch.nn.functional.silu(x)
def _sigmoid(x):
    return torch.sigmoid(x)
def _layernorm(x, axis=-1, eps=1e-5):
    m = x.mean(dim=axis, keepdim=True)
    v = x.var(dim=axis, keepdim=True, unbiased=False)
    return (x - m) / torch.sqrt(v + eps)
def _scatter_add(tgt, idx, src, axis=0):
    return tgt.clone().index_add_(axis, idx, src)
def _segment_sum(src, seg, n):
    out = torch.zeros((n,) + src.shape[1:], dtype=src.dtype)
    return out.index_add_(0, seg, src)
def _pad(x, pw):
    flat = tuple(v for pair in reversed(pw) for v in pair)
    return torch.nn.functional.pad(x, flat)

kernel_name = 'standalone__gqa_softmax__sampling'

def setup_inputs():

    _w = (lambda a: (lambda t: t.to(torch.bfloat16) if t.is_floating_point() else t)(torch.as_tensor(a)))
    B, Hq, Hkv, Sq, Sk, D = 8, 32, 8, 1, 8192, 128
    return {
        "q": _w((lambda *s: torch.randn(*s, dtype=torch.bfloat16) * 0.8)(B, Hq, Sq, D)),
        "k": _w((lambda *s: torch.randn(*s, dtype=torch.bfloat16) * 0.8)(B, Hkv, Sk, D)),
        "v": _w((lambda *s: torch.randn(*s, dtype=torch.bfloat16) * 0.05)(B, Hkv, Sk, D)),
    }

def reference(q, k, v):
    B, Hq, Sq, D = q.shape
    Hkv = k.shape[1]
    rep = Hq // Hkv
    k = (lambda x, n, axis: torch.repeat_interleave(x, n, dim=axis))(k, rep, axis=1)
    v = (lambda x, n, axis: torch.repeat_interleave(x, n, dim=axis))(v, rep, axis=1)
    scale = D ** -0.5
    scores = torch.einsum("bhqd,bhkd->bhqk", q, k) * scale
    p = _softmax(scores, axis=-1)
    return torch.einsum("bhqk,bhkd->bhqd", p, v)
```

```python
import struct, sys, math

def f32hex(x):
    return "0x%08x" % struct.unpack("<I", struct.pack("<f", x))[0]

class Gen:
    def __init__(self, NW=16, W=16, nt=True, name="standalone__gqa_softmax__sampling", ldflags=None,
                 interleave=False):
        self.NW, self.W, self.nt = NW, W, nt
        self.name = name
        self.lines = []
        self.vm = []
        self.ldflags = ldflags if ldflags is not None else (" nt" if nt else "")
        self.interleave = interleave

    def e(self, s):
        self.lines.append("    " + s)

    def label(self, s):
        self.lines.append(s + ":")

    def c(self, s):
        self.lines.append("    ; " + s)

    def vmem(self, text, tag):
        self.e(text)
        self.vm.append(tag)

    def wait_vm(self, tag):
        idx = self.vm.index(tag)
        n = len(self.vm) - 1 - idx
        assert n <= 63, n
        self.e("s_waitcnt vmcnt(%d)" % n)

    def build(self):
        NW, W = self.NW, self.W
        KPW = 2048 // NW
        NL = KPW // 4
        NQ = KPW // 16
        NU = KPW // 32
        assert W % 8 == 0
        vTID = 0
        vKoff, vVoff, vTmp = 1, 2, 3
        vQ = 4
        vACC = 8
        vACCL = 40
        vA = 44
        vF = 48
        vM = 56
        vW0, vW1 = 57, 58
        vLds = 59
        vPK = 60
        if NQ <= 16:
            vS = 40
            vWIN = vPK + NU
        else:
            vS = vPK + NU
            vWIN = vS + NQ
        vWIN = (vWIN + 3) // 4 * 4
        nvgpr = vWIN + 4 * W
        maxv = 512 // (NW // 4) if NW >= 4 else 512
        assert nvgpr <= min(256, maxv), (nvgpr, maxv)
        self.nvgpr = nvgpr
        def slot(x):
            r = vWIN + 4 * (x % W)
            return r
        sQp, sKp, sVp, sOp, sDp, sWp = 4, 6, 8, 10, 12, 14
        rK, rV, rQ, rW, rO, rD = 16, 20, 24, 28, 32, 36
        sOffK, sOffV = 40, 41
        sC, sLO, sHI = 42, 43, 44
        sT0, sT1, sT2 = 45, 46, 47
        sEx = 48
        sWave = 50
        LDS_M = 0
        LDS_O = 256
        OSTR = 2080
        lds_bytes = LDS_O + NW * OSTR
        self.lds_bytes = lds_bytes
        cval = math.log2(math.e) / math.sqrt(128.0)

        e = self.e
        e("s_cmp_ge_u32 s2, 256")
        e("s_cbranch_scc1 L_end")
        e("s_load_dwordx4 s[4:7], s[0:1], 0")
        e("s_load_dwordx4 s[8:11], s[0:1], 16")
        e("s_load_dwordx4 s[12:15], s[0:1], 32")
        e("v_and_b32 v%d, 63, v0" % vTmp)
        e("v_lshrrev_b32 v%d, 6, v0" % vLds)
        e("v_lshlrev_b32 v%d, 4, v%d" % (vVoff, vTmp))
        e("v_and_b32 v%d, 3, v0" % vKoff)
        e("v_lshlrev_b32 v%d, 4, v%d" % (vKoff, vKoff))
        e("v_bfe_u32 v%d, v0, 2, 2" % vW0)
        e("v_bfe_u32 v%d, v0, 4, 2" % vW1)
        e("v_lshl_add_u32 v%d, v%d, 8, v%d" % (vKoff, vW0, vKoff))
        e("v_lshl_add_u32 v%d, v%d, 6, v%d" % (vKoff, vW1, vKoff))
        e("v_and_b32 v%d, 3, v0" % vM)
        e("v_lshlrev_b32 v%d, 8, v%d" % (vM, vM))
        e("v_lshl_add_u32 v%d, v%d, 4, v%d" % (vM, vW0, vM))
        e("v_lshl_add_u32 v%d, v%d, 6, v%d" % (vM, vW1, vM))
        if not self.interleave:
            wsh = int(math.log2(KPW * 256))
            gstride = 4096
        else:
            wsh = 12
            gstride = 4096 * NW
        e("s_lshl_b32 s%d, s2, 19" % sT0)
        e("v_lshl_add_u32 v%d, v%d, %d, v%d" % (vKoff, vLds, wsh, vKoff))
        e("v_lshl_add_u32 v%d, v%d, %d, v%d" % (vVoff, vLds, wsh, vVoff))
        e("v_add_u32 v%d, s%d, v%d" % (vKoff, sT0, vKoff))
        e("v_add_u32 v%d, s%d, v%d" % (vVoff, sT0, vVoff))
        e("s_lshr_b32 s%d, s2, 2" % sT1)
        e("s_lshl_b32 s%d, s%d, 10" % (sT2, sT1))
        e("s_mov_b32 s%d, 0" % sOffK)
        e("s_mov_b32 s%d, 0" % sOffV)
        e("s_mov_b32 s%d, 0x8000000" % (rK + 2))
        e("s_mov_b32 s%d, 0x20000" % (rK + 3))
        e("s_mov_b32 s%d, 0x8000000" % (rV + 2))
        e("s_mov_b32 s%d, 0x20000" % (rV + 3))
        e("s_mov_b32 s%d, 0x10000" % (rQ + 2))
        e("s_mov_b32 s%d, 0x20000" % (rQ + 3))
        e("s_waitcnt lgkmcnt(0)")
        e("s_mov_b32 s%d, s%d" % (rK, sKp))
        e("s_and_b32 s%d, s%d, 0xffff" % (rK + 1, sKp + 1))
        e("s_mov_b32 s%d, s%d" % (rQ, sQp))
        e("s_and_b32 s%d, s%d, 0xffff" % (rQ + 1, sQp + 1))

        state = {"k": 0, "v": 0}
        def issue(x):
            r = slot(x)
            if x < NL:
                grp, j = divmod(x, 4)
                if grp != state["k"]:
                    e("s_add_u32 s%d, s%d, %d" % (sOffK, sOffK, gstride))
                    state["k"] = grp
                self.vmem("buffer_load_dwordx4 v[%d:%d], v%d, s[%d:%d], s%d offen offset:%d%s" %
                          (r, r + 3, vKoff, rK, rK + 3, sOffK, j * 1024, self.ldflags), ("ld", x))
            else:
                y = x - NL
                grp, j = divmod(y, 4)
                if grp != state["v"]:
                    e("s_add_u32 s%d, s%d, %d" % (sOffV, sOffV, gstride))
                    state["v"] = grp
                self.vmem("buffer_load_dwordx4 v[%d:%d], v%d, s[%d:%d], s%d offen offset:%d%s" %
                          (r, r + 3, vVoff, rV, rV + 3, sOffV, j * 1024, self.ldflags), ("ld", x))

        self.vmem("buffer_load_dwordx4 v[%d:%d], v%d, s[%d:%d], s%d offen" % (vQ, vQ + 3, vM, rQ, rQ + 3, sT2), "q")
        e("s_mov_b32 s%d, s%d" % (rV, sVp))
        e("s_and_b32 s%d, s%d, 0xffff" % (rV + 1, sVp + 1))
        nxt = 0
        for x in range(min(W, 2 * NL)):
            issue(x); nxt += 1
        e("s_mov_b32 s%d, %s" % (sC, f32hex(cval)))
        e("s_mov_b32 s%d, 0x05040100" % sLO)
        e("s_mov_b32 s%d, 0x07060302" % sHI)
        e("s_mov_b32 s%d, s%d" % (rW, sWp))
        e("s_and_b32 s%d, s%d, 0xffff" % (rW + 1, sWp + 1))
        e("s_mov_b32 s%d, 0x100000" % (rW + 2))
        e("s_mov_b32 s%d, 0x20000" % (rW + 3))
        e("s_mov_b32 s%d, s%d" % (rO, sOp))
        e("s_and_b32 s%d, s%d, 0xffff" % (rO + 1, sOp + 1))
        e("s_mov_b32 s%d, 0x10000" % (rO + 2))
        e("s_mov_b32 s%d, 0x20000" % (rO + 3))
        e("s_mov_b32 s%d, s%d" % (rD, sDp))
        e("s_and_b32 s%d, s%d, 0xffff" % (rD + 1, sDp + 1))
        e("s_mov_b32 s%d, 0x100" % (rD + 2))
        e("s_mov_b32 s%d, 0x20000" % (rD + 3))
        e("v_readfirstlane_b32 s%d, v%d" % (sWave, vLds))

        def dpp_reduce(q):
            D = vACC + 16 * (q & 1)
            d = lambda j, r: D + 4 * j + r
            rot = "row_ror:12"
            for (w, j0) in ((vW0, 0), (vW1, 2)):
                e("v_add_f32_dpp v%d, v%d, v%d %s row_mask:0xf bank_mask:0x1" % (w, d(j0, 1), d(j0, 0), rot))
                e("v_add_f32_dpp v%d, v%d, v%d %s row_mask:0xf bank_mask:0x4" % (w, d(j0, 3), d(j0, 2), rot))
                e("v_add_f32_dpp v%d, v%d, v%d %s row_mask:0xf bank_mask:0x2" % (w, d(j0 + 1, 2), d(j0 + 1, 1), rot))
                e("v_add_f32_dpp v%d, v%d, v%d %s row_mask:0xf bank_mask:0x8" % (w, d(j0 + 1, 0), d(j0 + 1, 3), rot))
            e("v_add_f32_dpp v%d, v%d, v%d row_ror:8 row_mask:0xf bank_mask:0x3" % (vS + q, vW0, vW0))
            e("s_nop 0")
            e("v_add_f32_dpp v%d, v%d, v%d row_ror:8 row_mask:0xf bank_mask:0xc" % (vS + q, vW1, vW1))

        for q in range(NQ):
            self.c("K group %d" % q)
            D = vACC + 16 * (q & 1)
            self.wait_vm(("ld", 4 * q + 3))
            for j in range(4):
                r = slot(4 * q + j)
                e("v_mfma_f32_16x16x32_bf16 v[%d:%d], v[%d:%d], v[%d:%d], 0" %
                  (D + 4 * j, D + 4 * j + 3, r, r + 3, vQ, vQ + 3))
            for j in range(4):
                if nxt < 2 * NL:
                    issue(nxt); nxt += 1
            if q > 0:
                dpp_reduce(q - 1)
        e("s_nop 7")
        dpp_reduce(NQ - 1)
        e("v_max_f32 v%d, v%d, v%d" % (vM, vS, vS + 1))
        for q in range(2, NQ, 2):
            e("v_max3_f32 v%d, v%d, v%d, v%d" % (vM, vM, vS + q, vS + q + 1))

        def xlane_max(v, t):
            e("s_nop 1")
            e("v_max_f32_dpp v%d, v%d, v%d row_ror:4 row_mask:0xf bank_mask:0xf" % (v, v, v))
            e("s_nop 1")
            e("v_max_f32_dpp v%d, v%d, v%d row_ror:8 row_mask:0xf bank_mask:0xf" % (v, v, v))
            e("v_mov_b32 v%d, v%d" % (t, v))
            e("s_nop 1")
            e("v_permlane16_swap_b32 v%d, v%d" % (v, t))
            e("v_max_f32 v%d, v%d, v%d" % (v, v, t))
            e("v_mov_b32 v%d, v%d" % (t, v))
            e("s_nop 1")
            e("v_permlane32_swap_b32 v%d, v%d" % (v, t))
            e("v_max_f32 v%d, v%d, v%d" % (v, v, t))
        xlane_max(vM, vW0)
        e("v_and_b32 v%d, 3, v0" % vW1)
        e("v_lshlrev_b32 v%d, 2, v%d" % (vW1, vW1))
        e("v_lshl_add_u32 v%d, v%d, 4, v%d" % (vW1, vLds, vW1))
        e("ds_write_b32 v%d, v%d offset:%d" % (vW1, vM, LDS_M))
        e("v_lshlrev_b32 v%d, 2, v%d" % (vW1, vTmp))
        e("v_and_b32 v%d, %d, v%d" % (vW1, NW * 16 - 1, vW1))
        e("s_waitcnt lgkmcnt(0)")
        e("s_barrier")
        e("ds_read_b32 v%d, v%d offset:%d" % (vM, vW1, LDS_M))
        for r in range(4):
            e("v_mov_b32 v%d, 0x3f803f80" % (vQ + r))
        e("s_waitcnt lgkmcnt(0)")
        xlane_max(vM, vW0)
        e("v_mul_f32 v%d, s%d, v%d" % (vW1, sC, vM))
        for q in range(NQ):
            e("v_fma_f32 v%d, v%d, s%d, -v%d" % (vS + q, vS + q, sC, vW1))
        for q in range(NQ):
            e("v_exp_f32 v%d, v%d" % (vS + q, vS + q))
        e("s_nop 0")
        for u in range(NU):
            e("v_cvt_pk_bf16_f32 v%d, v%d, v%d" % (vPK + u, vS + 2 * u, vS + 2 * u + 1))

        for u in range(NU):
            self.c("V group %d" % u)
            e("v_mov_b32 v%d, v%d" % (vA, vPK + u))
            e("s_nop 0")
            e("v_mov_b32_dpp v%d, v%d row_ror:12 row_mask:0xf bank_mask:0xf" % (vA + 1, vPK + u))
            e("v_mov_b32_dpp v%d, v%d row_ror:8 row_mask:0xf bank_mask:0xf" % (vA + 2, vPK + u))
            e("v_mov_b32_dpp v%d, v%d row_ror:4 row_mask:0xf bank_mask:0xf" % (vA + 3, vPK + u))
            base = NL + 8 * u
            self.wait_vm(("ld", base + 7))
            def perms(i):
                F = vF + 4 * (i & 1)
                sel = sHI if (i & 1) else sLO
                for p in range(4):
                    lo = slot(base + p) + (i >> 1)
                    hi = slot(base + p + 4) + (i >> 1)
                    e("v_perm_b32 v%d, v%d, v%d, s%d" % (F + p, hi, lo, sel))
            def mf(i):
                F = vF + 4 * (i & 1)
                a = vACC + 4 * i
                cc = "0" if u == 0 else "v[%d:%d]" % (a, a + 3)
                e("v_mfma_f32_16x16x32_bf16 v[%d:%d], v[%d:%d], v[%d:%d], %s" % (a, a + 3, vA, vA + 3, F, F + 3, cc))
            perms(0)
            cc = "0" if u == 0 else "v[%d:%d]" % (vACCL, vACCL + 3)
            e("v_mfma_f32_16x16x32_bf16 v[%d:%d], v[%d:%d], v[%d:%d], %s" % (vACCL, vACCL + 3, vA, vA + 3, vQ, vQ + 3, cc))
            for i in range(8):
                if i + 1 < 8:
                    perms(i + 1)
                else:
                    for j in range(8):
                        if nxt < 2 * NL:
                            issue(nxt); nxt += 1
                    e("s_nop 1")
                mf(i)
        e("s_mul_i32 s%d, s%d, %d" % (sT0, sWave, OSTR))
        e("v_lshlrev_b32 v%d, 4, v%d" % (vW0, vTmp))
        e("v_add_u32 v%d, s%d, v%d" % (vW0, sT0, vW0))
        e("s_mov_b64 exec, 0xffff")
        e("s_nop 4")
        for i in range(8):
            e("ds_write_b128 v%d, v[%d:%d] offset:%d" % (vW0, vACC + 4 * i, vACC + 4 * i + 3, LDS_O + i * 256))
        e("s_mov_b64 exec, 1")
        e("ds_write_b128 v%d, v[%d:%d] offset:%d" % (vW0, vACCL, vACCL + 3, LDS_O + 2048))
        e("s_mov_b64 exec, -1")
        e("s_waitcnt lgkmcnt(0)")
        e("s_barrier")
        e("s_cmp_ge_u32 s%d, 2" % sWave)
        e("s_cbranch_scc1 L_end")
        R = vWIN
        e("v_lshlrev_b32 v%d, 4, v0" % vW0)
        e("v_mov_b32 v%d, 0" % vW1)
        oacc, lacc = 8, 12
        first = True
        for w0 in range(0, NW, 8):
            n = min(8, NW - w0)
            for w in range(n):
                e("ds_read_b128 v[%d:%d], v%d offset:%d" % (R + 4 * w, R + 4 * w + 3, vW0, LDS_O + (w0 + w) * OSTR))
            for w in range(n):
                e("ds_read_b128 v[%d:%d], v%d offset:%d" % (R + 32 + 4 * w, R + 32 + 4 * w + 3, vW1, LDS_O + (w0 + w) * OSTR + 2048))
            for w in range(n):
                e("s_waitcnt lgkmcnt(%d)" % (2 * n - 1 - w))
                for r in range(4):
                    if first and w == 0:
                        e("v_mov_b32 v%d, v%d" % (oacc + r, R + r))
                    else:
                        e("v_add_f32 v%d, v%d, v%d" % (oacc + r, oacc + r, R + 4 * w + r))
            for w in range(n):
                e("s_waitcnt lgkmcnt(%d)" % (n - 1 - w))
                for r in range(4):
                    if first and w == 0:
                        e("v_mov_b32 v%d, v%d" % (lacc + r, R + 32 + r))
                    else:
                        e("v_add_f32 v%d, v%d, v%d" % (lacc + r, lacc + r, R + 32 + 4 * w + r))
            first = False
        e("s_lshl_b32 s%d, s2, 12" % sT0)
        e("s_lshl_b32 s%d, s%d, 11" % (sT1, sWave))
        e("s_add_u32 s%d, s%d, s%d" % (sT0, sT0, sT1))
        e("v_lshlrev_b32 v%d, 4, v%d" % (vW0, vTmp))
        e("v_lshlrev_b32 v%d, 2, v%d" % (vW1, vTmp))
        e("buffer_store_dwordx4 v[%d:%d], v%d, s[%d:%d], s%d offen sc1" % (oacc, oacc + 3, vW0, rW, rW + 3, sT0))
        e("s_mov_b64 exec, 0xf")
        e("buffer_store_dword v%d, v%d, s[%d:%d], s%d offen offset:1024 sc1" % (vM, vW1, rW, rW + 3, sT0))
        e("s_mov_b64 exec, 1")
        e("buffer_store_dwordx4 v[%d:%d], v%d, s[%d:%d], s%d offen offset:1040 sc1" % (lacc, lacc + 3, vW0, rW, rW + 3, sT0))
        e("s_lshl_b32 s%d, s%d, 4" % (sT1, sWave))
        e("s_lshl_b32 s%d, 1, s%d" % (sEx, sT1))
        e("v_mov_b32 v16, s%d" % sEx)
        e("s_lshr_b32 s%d, s2, 2" % sEx)
        e("s_lshl_b32 s%d, s%d, 2" % (sEx, sEx))
        e("s_waitcnt vmcnt(0)")
        e("buffer_atomic_add v16, v%d, s[%d:%d], s%d offen sc0" % (vW0, rD, rD + 3, sEx))
        e("s_waitcnt vmcnt(0)")
        e("v_readfirstlane_b32 s%d, v16" % sEx)
        e("s_mov_b64 exec, -1")
        e("s_lshr_b32 s%d, s%d, s%d" % (sEx, sEx, sT1))
        e("s_and_b32 s%d, s%d, 0xffff" % (sEx, sEx))
        e("s_cmp_lg_u32 s%d, 3" % sEx)
        e("s_cbranch_scc1 L_end")
        e("s_and_b32 s%d, s2, 0xfc" % sT0)
        e("s_lshl_b32 s%d, s%d, 12" % (sT0, sT0))
        e("s_lshl_b32 s%d, s%d, 11" % (sT1, sWave))
        e("s_add_u32 s%d, s%d, s%d" % (sT0, sT0, sT1))
        e("v_mov_b32 v%d, 0" % vW1)
        O = [R + 4 * k for k in range(4)]
        M = [R + 16 + 4 * k for k in range(4)]
        L = [R + 32 + 4 * k for k in range(4)]
        for k in range(4):
            e("buffer_load_dwordx4 v[%d:%d], v%d, s[%d:%d], s%d offen offset:1024 sc1" % (M[k], M[k] + 3, vW1, rW, rW + 3, sT0))
            e("buffer_load_dwordx4 v[%d:%d], v%d, s[%d:%d], s%d offen offset:1040 sc1" % (L[k], L[k] + 3, vW1, rW, rW + 3, sT0))
            e("buffer_load_dwordx4 v[%d:%d], v%d, s[%d:%d], s%d offen sc1" % (O[k], O[k] + 3, vW0, rW, rW + 3, sT0))
            if k < 3:
                e("s_add_u32 s%d, s%d, 4096" % (sT0, sT0))
        e("v_and_b32 v%d, 15, v%d" % (vW0, vTmp))
        e("v_lshlrev_b32 v%d, 4, v%d" % (vW0, vW0))
        e("v_lshrrev_b32 v%d, 4, v%d" % (vW1, vTmp))
        e("v_lshl_add_u32 v%d, v%d, 1, v%d" % (vW0, vW1, vW0))
        e("s_lshl_b32 s%d, s%d, 3" % (sT1, sWave))
        e("s_add_u32 s%d, s%d, s%d" % (sT2, sT2, sT1))
        e("s_waitcnt vmcnt(0)")
        T = 8
        for h in range(4):
            mx = T + h
            e("v_max3_f32 v%d, v%d, v%d, v%d" % (mx, M[0] + h, M[1] + h, M[2] + h))
            e("v_max_f32 v%d, v%d, v%d" % (mx, mx, M[3] + h))
            for k in range(4):
                e("v_sub_f32 v%d, v%d, v%d" % (M[k] + h, M[k] + h, mx))
                e("v_mul_f32 v%d, s%d, v%d" % (M[k] + h, sC, M[k] + h))
        for h in range(4):
            for k in range(4):
                e("v_exp_f32 v%d, v%d" % (M[k] + h, M[k] + h))
        e("s_nop 0")
        for h in range(4):
            e("v_mul_f32 v%d, v%d, v%d" % (T + h, M[0] + h, L[0] + h))
            e("v_mul_f32 v%d, v%d, v%d" % (T + 4 + h, M[0] + h, O[0] + h))
            for k in range(1, 4):
                e("v_fmac_f32 v%d, v%d, v%d" % (T + h, M[k] + h, L[k] + h))
                e("v_fmac_f32 v%d, v%d, v%d" % (T + 4 + h, M[k] + h, O[k] + h))
        for h in range(4):
            e("v_rcp_f32 v%d, v%d" % (T + h, T + h))
        e("s_nop 0")
        for h in range(4):
            e("v_mul_f32 v%d, v%d, v%d" % (T + 4 + h, T + 4 + h, T + h))
        for h in range(4):
            e("v_cvt_pk_bf16_f32 v%d, v%d, v%d" % (T + 4 + h, T + 4 + h, T + 4 + h))
        for h in range(4):
            e("buffer_store_short v%d, v%d, s[%d:%d], s%d offen offset:%d" % (T + 4 + h, vW0, rO, rO + 3, sT2, h * 256))
        self.label("L_end")
        e("s_endpgm")

    def text(self):
        self.build()
        hdr = open("standalone__gqa_softmax__sampling.s.ref").read().split("; @launch")[0]
        out = hdr
        out += "; @launch grid=(256,1,1) block=(%d,1,1) lds=%d\n" % (self.NW * 64, self.lds_bytes)
        out += '.amdgcn_target "amdgcn-amd-amdhsa--gfx950"\n.text\n'
        k = self.name + "_kernel"
        out += ".globl %s\n.p2align 8\n.type %s,@function\n%s:\n" % (k, k, k)
        out += "\n".join(self.lines) + "\n"
        acc = (self.nvgpr + 3) // 4 * 4
        out += """.section .rodata,"a"
.p2align 6
.amdhsa_kernel %s
  .amdhsa_next_free_vgpr %d
  .amdhsa_next_free_sgpr 56
  .amdhsa_accum_offset %d
  .amdhsa_group_segment_fixed_size 0
  .amdhsa_kernarg_size 48
  .amdhsa_user_sgpr_count 2
  .amdhsa_user_sgpr_kernarg_segment_ptr 1
  .amdhsa_system_sgpr_workgroup_id_x 1
.end_amdhsa_kernel
""" % (k, self.nvgpr, acc)
        return out

if __name__ == "__main__":
    import argparse
    ap = argparse.ArgumentParser()
    ap.add_argument("--nw", type=int, default=16)
    ap.add_argument("--w", type=int, default=16)
    ap.add_argument("--ld", default=" nt")
    ap.add_argument("--il", type=int, default=0)
    ap.add_argument("-o", default="standalone__gqa_softmax__sampling.s")
    a = ap.parse_args()
    g = Gen(NW=a.nw, W=a.w, ldflags=a.ld, interleave=bool(a.il))
    open(a.o, "w").write(g.text())
    print("vgprs", g.nvgpr, "lds", g.lds_bytes)
```

```python
import struct, sys, math

def f32hex(x):
    return "0x%08x" % struct.unpack("<I", struct.pack("<f", x))[0]

class Gen:
    def __init__(self, NW=16, W=16, nt=True, name="standalone__gqa_softmax__sampling", ldflags=None,
                 interleave=False, abl=''):
        self.NW, self.W, self.nt = NW, W, nt
        self.name = name
        self.lines = []
        self.vm = []
        self.ldflags = ldflags if ldflags is not None else (" nt" if nt else "")
        self.interleave = interleave
        self.abl = abl

    def e(self, s):
        self.lines.append("    " + s)

    def label(self, s):
        self.lines.append(s + ":")

    def c(self, s):
        self.lines.append("    ; " + s)

    def vmem(self, text, tag):
        self.e(text)
        self.vm.append(tag)

    def wait_vm(self, tag):
        idx = self.vm.index(tag)
        n = len(self.vm) - 1 - idx
        assert n <= 63, n
        self.e("s_waitcnt vmcnt(%d)" % n)

    def build(self):
        NW, W = self.NW, self.W
        KPW = 2048 // NW
        NL = KPW // 4
        NQ = KPW // 16
        NU = KPW // 32
        assert W % 8 == 0
        vTID = 0
        vKoff, vVoff, vTmp = 1, 2, 3
        vQ = 4
        vACC = 8
        vACCL = 40
        vA = 44
        vF = 48
        vM = 56
        vW0, vW1 = 57, 58
        vLds = 59
        vPK = 60
        if NQ <= 16:
            vS = 40
            vWIN = vPK + NU
        else:
            vS = vPK + NU
            vWIN = vS + NQ
        vWIN = (vWIN + 3) // 4 * 4
        nvgpr = vWIN + max(4 * W, 64)
        maxv = 512 // (NW // 4) if NW >= 4 else 512
        assert nvgpr <= min(256, maxv), (nvgpr, maxv)
        self.nvgpr = nvgpr
        def slot(x):
            r = vWIN + 4 * (x % W)
            return r
        sQp, sKp, sVp, sOp, sDp, sWp = 4, 6, 8, 10, 12, 14
        rK, rV, rQ, rW, rO, rD = 16, 20, 24, 28, 32, 36
        sOffK, sOffV = 40, 41
        sC, sLO, sHI = 42, 43, 44
        sT0, sT1, sT2 = 45, 46, 47
        sEx = 48
        sWave = 50
        LDS_M = 0
        LDS_O = 256
        OSTR = 2080
        lds_bytes = LDS_O + NW * OSTR
        self.lds_bytes = lds_bytes
        cval = math.log2(math.e) / math.sqrt(128.0)

        e = self.e
        self.nst = 0
        def stamp():
            if 'stamp' in self.abl:
                e("s_memrealtime s[%d:%d]" % (60 + 2 * self.nst, 61 + 2 * self.nst))
                self.nst += 1
        def stamp_store():
            if 'stamp' in self.abl:
                e("s_waitcnt lgkmcnt(0)")
                e("s_mov_b64 exec, 1")
                for i in range(8):
                    e("v_mov_b32 v%d, s%d" % (16 + i, 60 + 2 * i if i < self.nst else 60))
                e("s_lshl_b32 s%d, s2, %d" % (sT0, int(math.log2(NW)) + 5))
                e("s_lshl_b32 s%d, s%d, 5" % (sT1, sWave))
                e("s_add_u32 s%d, s%d, s%d" % (sT0, sT0, sT1))
                e("s_add_u32 s%d, s%d, 0x100000" % (sT0, sT0))
                e("v_mov_b32 v24, 0")
                e("buffer_store_dwordx4 v[16:19], v24, s[%d:%d], s%d offen" % (rW, rW + 3, sT0))
                e("buffer_store_dwordx4 v[20:23], v24, s[%d:%d], s%d offen offset:16" % (rW, rW + 3, sT0))
                e("s_mov_b64 exec, -1")
        stamp()
        e("s_cmp_ge_u32 s2, 256")
        e("s_cbranch_scc1 L_end")
        e("s_load_dwordx4 s[4:7], s[0:1], 0")
        e("s_load_dwordx4 s[8:11], s[0:1], 16")
        e("s_load_dwordx4 s[12:15], s[0:1], 32")
        e("v_and_b32 v%d, 63, v0" % vTmp)
        e("v_lshrrev_b32 v%d, 6, v0" % vLds)
        e("v_lshlrev_b32 v%d, 4, v%d" % (vVoff, vTmp))
        e("v_and_b32 v%d, 3, v0" % vKoff)
        e("v_lshlrev_b32 v%d, 4, v%d" % (vKoff, vKoff))
        e("v_bfe_u32 v%d, v0, 2, 2" % vW0)
        e("v_bfe_u32 v%d, v0, 4, 2" % vW1)
        e("v_lshl_add_u32 v%d, v%d, 8, v%d" % (vKoff, vW0, vKoff))
        e("v_lshl_add_u32 v%d, v%d, 6, v%d" % (vKoff, vW1, vKoff))
        e("v_and_b32 v%d, 3, v0" % vM)
        e("v_lshlrev_b32 v%d, 8, v%d" % (vM, vM))
        e("v_lshl_add_u32 v%d, v%d, 4, v%d" % (vM, vW0, vM))
        e("v_lshl_add_u32 v%d, v%d, 6, v%d" % (vM, vW1, vM))
        if not self.interleave:
            wsh = int(math.log2(KPW * 256))
            gstride = 4096
        else:
            wsh = 12
            gstride = 4096 * NW
        e("s_lshl_b32 s%d, s2, 19" % sT0)
        e("v_lshl_add_u32 v%d, v%d, %d, v%d" % (vKoff, vLds, wsh, vKoff))
        e("v_lshl_add_u32 v%d, v%d, %d, v%d" % (vVoff, vLds, wsh, vVoff))
        e("v_add_u32 v%d, s%d, v%d" % (vKoff, sT0, vKoff))
        e("v_add_u32 v%d, s%d, v%d" % (vVoff, sT0, vVoff))
        e("s_lshr_b32 s%d, s2, 2" % sT1)
        e("s_lshl_b32 s%d, s%d, 10" % (sT2, sT1))
        e("s_mov_b32 s%d, 0" % sOffK)
        e("s_mov_b32 s%d, 0" % sOffV)
        e("s_mov_b32 s%d, 0x8000000" % (rK + 2))
        e("s_mov_b32 s%d, 0x20000" % (rK + 3))
        e("s_mov_b32 s%d, 0x8000000" % (rV + 2))
        e("s_mov_b32 s%d, 0x20000" % (rV + 3))
        e("s_mov_b32 s%d, 0x10000" % (rQ + 2))
        e("s_mov_b32 s%d, 0x20000" % (rQ + 3))
        e("s_waitcnt lgkmcnt(0)")
        e("s_mov_b32 s%d, s%d" % (rK, sKp))
        e("s_and_b32 s%d, s%d, 0xffff" % (rK + 1, sKp + 1))
        e("s_mov_b32 s%d, s%d" % (rQ, sQp))
        e("s_and_b32 s%d, s%d, 0xffff" % (rQ + 1, sQp + 1))

        state = {"k": 0, "v": 0}
        def issue(x):
            r = slot(x)
            if x < NL:
                grp, j = divmod(x, 4)
                if grp != state["k"]:
                    e("s_add_u32 s%d, s%d, %d" % (sOffK, sOffK, gstride))
                    state["k"] = grp
                self.vmem("buffer_load_dwordx4 v[%d:%d], v%d, s[%d:%d], s%d offen offset:%d%s" %
                          (r, r + 3, vKoff, rK, rK + 3, sOffK, j * 1024, self.ldflags), ("ld", x))
            else:
                y = x - NL
                grp, j = divmod(y, 4)
                if grp != state["v"]:
                    e("s_add_u32 s%d, s%d, %d" % (sOffV, sOffV, gstride))
                    state["v"] = grp
                self.vmem("buffer_load_dwordx4 v[%d:%d], v%d, s[%d:%d], s%d offen offset:%d%s" %
                          (r, r + 3, vVoff, rV, rV + 3, sOffV, j * 1024, self.ldflags), ("ld", x))

        self.vmem("buffer_load_dwordx4 v[%d:%d], v%d, s[%d:%d], s%d offen" % (vQ, vQ + 3, vM, rQ, rQ + 3, sT2), "q")
        e("s_mov_b32 s%d, s%d" % (rV, sVp))
        e("s_and_b32 s%d, s%d, 0xffff" % (rV + 1, sVp + 1))
        nxt = 0
        for x in range(min(W, 2 * NL)):
            issue(x); nxt += 1
        e("s_mov_b32 s%d, %s" % (sC, f32hex(cval)))
        e("s_mov_b32 s%d, 0x05040100" % sLO)
        e("s_mov_b32 s%d, 0x07060302" % sHI)
        e("s_mov_b32 s%d, s%d" % (rW, sWp))
        e("s_and_b32 s%d, s%d, 0xffff" % (rW + 1, sWp + 1))
        e("s_mov_b32 s%d, 0x200000" % (rW + 2))
        e("s_mov_b32 s%d, 0x20000" % (rW + 3))
        e("s_mov_b32 s%d, s%d" % (rO, sOp))
        e("s_and_b32 s%d, s%d, 0xffff" % (rO + 1, sOp + 1))
        e("s_mov_b32 s%d, 0x10000" % (rO + 2))
        e("s_mov_b32 s%d, 0x20000" % (rO + 3))
        e("s_mov_b32 s%d, s%d" % (rD, sDp))
        e("s_and_b32 s%d, s%d, 0xffff" % (rD + 1, sDp + 1))
        e("s_mov_b32 s%d, 0x100" % (rD + 2))
        e("s_mov_b32 s%d, 0x20000" % (rD + 3))
        e("v_readfirstlane_b32 s%d, v%d" % (sWave, vLds))

        def dpp_reduce(q):
            D = vACC + 16 * (q & 1)
            d = lambda j, r: D + 4 * j + r
            rot = "row_ror:12"
            for (w, j0) in ((vW0, 0), (vW1, 2)):
                e("v_add_f32_dpp v%d, v%d, v%d %s row_mask:0xf bank_mask:0x1" % (w, d(j0, 1), d(j0, 0), rot))
                e("v_add_f32_dpp v%d, v%d, v%d %s row_mask:0xf bank_mask:0x4" % (w, d(j0, 3), d(j0, 2), rot))
                e("v_add_f32_dpp v%d, v%d, v%d %s row_mask:0xf bank_mask:0x2" % (w, d(j0 + 1, 2), d(j0 + 1, 1), rot))
                e("v_add_f32_dpp v%d, v%d, v%d %s row_mask:0xf bank_mask:0x8" % (w, d(j0 + 1, 0), d(j0 + 1, 3), rot))
            e("v_add_f32_dpp v%d, v%d, v%d row_ror:8 row_mask:0xf bank_mask:0x3" % (vS + q, vW0, vW0))
            e("s_nop 0")
            e("v_add_f32_dpp v%d, v%d, v%d row_ror:8 row_mask:0xf bank_mask:0xc" % (vS + q, vW1, vW1))

        for q in range(NQ):
            self.c("K group %d" % q)
            D = vACC + 16 * (q & 1)
            self.wait_vm(("ld", 4 * q + 3))
            if q == 0:
                stamp()
            for j in range(4):
                r = slot(4 * q + j)
                e("v_mfma_f32_16x16x32_bf16 v[%d:%d], v[%d:%d], v[%d:%d], 0" %
                  (D + 4 * j, D + 4 * j + 3, r, r + 3, vQ, vQ + 3))
            for j in range(4):
                if nxt < 2 * NL:
                    issue(nxt); nxt += 1
            if q > 0:
                dpp_reduce(q - 1)
        e("s_nop 7")
        dpp_reduce(NQ - 1)
        e("v_max_f32 v%d, v%d, v%d" % (vM, vS, vS + 1))
        for q in range(2, NQ, 2):
            e("v_max3_f32 v%d, v%d, v%d, v%d" % (vM, vM, vS + q, vS + q + 1))

        def xlane_max(v, t):
            e("s_nop 1")
            e("v_max_f32_dpp v%d, v%d, v%d row_ror:4 row_mask:0xf bank_mask:0xf" % (v, v, v))
            e("s_nop 1")
            e("v_max_f32_dpp v%d, v%d, v%d row_ror:8 row_mask:0xf bank_mask:0xf" % (v, v, v))
            e("v_mov_b32 v%d, v%d" % (t, v))
            e("s_nop 1")
            e("v_permlane16_swap_b32 v%d, v%d" % (v, t))
            e("v_max_f32 v%d, v%d, v%d" % (v, v, t))
            e("v_mov_b32 v%d, v%d" % (t, v))
            e("s_nop 1")
            e("v_permlane32_swap_b32 v%d, v%d" % (v, t))
            e("v_max_f32 v%d, v%d, v%d" % (v, v, t))
        xlane_max(vM, vW0)
        e("v_and_b32 v%d, 3, v0" % vW1)
        e("v_lshlrev_b32 v%d, 2, v%d" % (vW1, vW1))
        e("v_lshl_add_u32 v%d, v%d, 4, v%d" % (vW1, vLds, vW1))
        e("ds_write_b32 v%d, v%d offset:%d" % (vW1, vM, LDS_M))
        e("v_lshlrev_b32 v%d, 2, v%d" % (vW1, vTmp))
        e("v_and_b32 v%d, %d, v%d" % (vW1, NW * 16 - 1, vW1))
        e("s_waitcnt lgkmcnt(0)")
        stamp()
        if 'nomid' not in self.abl:
            e("s_barrier")
        stamp()
        e("ds_read_b32 v%d, v%d offset:%d" % (vM, vW1, LDS_M))
        for r in range(4):
            e("v_mov_b32 v%d, 0x3f803f80" % (vQ + r))
        e("s_waitcnt lgkmcnt(0)")
        xlane_max(vM, vW0)
        e("v_mul_f32 v%d, s%d, v%d" % (vW1, sC, vM))
        for q in range(NQ):
            e("v_fma_f32 v%d, v%d, s%d, -v%d" % (vS + q, vS + q, sC, vW1))
        for q in range(NQ):
            e("v_exp_f32 v%d, v%d" % (vS + q, vS + q))
        e("s_nop 0")
        for u in range(NU):
            e("v_cvt_pk_bf16_f32 v%d, v%d, v%d" % (vPK + u, vS + 2 * u, vS + 2 * u + 1))

        for u in range(NU):
            self.c("V group %d" % u)
            e("v_mov_b32 v%d, v%d" % (vA, vPK + u))
            e("s_nop 0")
            e("v_mov_b32_dpp v%d, v%d row_ror:12 row_mask:0xf bank_mask:0xf" % (vA + 1, vPK + u))
            e("v_mov_b32_dpp v%d, v%d row_ror:8 row_mask:0xf bank_mask:0xf" % (vA + 2, vPK + u))
            e("v_mov_b32_dpp v%d, v%d row_ror:4 row_mask:0xf bank_mask:0xf" % (vA + 3, vPK + u))
            base = NL + 8 * u
            self.wait_vm(("ld", base + 7))
            def perms(i):
                F = vF + 4 * (i & 1)
                sel = sHI if (i & 1) else sLO
                for p in range(4):
                    lo = slot(base + p) + (i >> 1)
                    hi = slot(base + p + 4) + (i >> 1)
                    e("v_perm_b32 v%d, v%d, v%d, s%d" % (F + p, hi, lo, sel))
            def mf(i):
                F = vF + 4 * (i & 1)
                a = vACC + 4 * i
                cc = "0" if u == 0 else "v[%d:%d]" % (a, a + 3)
                e("v_mfma_f32_16x16x32_bf16 v[%d:%d], v[%d:%d], v[%d:%d], %s" % (a, a + 3, vA, vA + 3, F, F + 3, cc))
            perms(0)
            cc = "0" if u == 0 else "v[%d:%d]" % (vACCL, vACCL + 3)
            e("v_mfma_f32_16x16x32_bf16 v[%d:%d], v[%d:%d], v[%d:%d], %s" % (vACCL, vACCL + 3, vA, vA + 3, vQ, vQ + 3, cc))
            for i in range(8):
                if i + 1 < 8:
                    perms(i + 1)
                else:
                    for j in range(8):
                        if nxt < 2 * NL:
                            issue(nxt); nxt += 1
                    e("s_nop 1")
                mf(i)
        stamp()
        if 'noepi' in self.abl:
            e('s_endpgm')
        e("s_mul_i32 s%d, s%d, %d" % (sT0, sWave, OSTR))
        e("v_lshlrev_b32 v%d, 4, v%d" % (vW0, vTmp))
        e("v_add_u32 v%d, s%d, v%d" % (vW0, sT0, vW0))
        e("s_mov_b64 exec, 0xffff")
        e("s_nop 4")
        for i in range(8):
            e("ds_write_b128 v%d, v[%d:%d] offset:%d" % (vW0, vACC + 4 * i, vACC + 4 * i + 3, LDS_O + i * 256))
        e("s_mov_b64 exec, 1")
        e("ds_write_b128 v%d, v[%d:%d] offset:%d" % (vW0, vACCL, vACCL + 3, LDS_O + 2048))
        e("s_mov_b64 exec, -1")
        e("s_waitcnt lgkmcnt(0)")
        e("s_barrier")
        stamp()
        nst_save = self.nst
        if 'stamp' in self.abl:
            e("s_cmp_lt_u32 s%d, 2" % sWave)
            e("s_cbranch_scc1 L_red")
            stamp_store()
            e("s_endpgm")
            self.label("L_red")
        if 'nored' in self.abl:
            e('s_endpgm')
        e("s_cmp_ge_u32 s%d, 2" % sWave)
        e("s_cbranch_scc1 L_end")
        R = vWIN
        e("v_lshlrev_b32 v%d, 4, v0" % vW0)
        e("v_mov_b32 v%d, 0" % vW1)
        oacc, lacc = 8, 12
        first = True
        for w0 in range(0, NW, 8):
            n = min(8, NW - w0)
            for w in range(n):
                e("ds_read_b128 v[%d:%d], v%d offset:%d" % (R + 4 * w, R + 4 * w + 3, vW0, LDS_O + (w0 + w) * OSTR))
            for w in range(n):
                e("ds_read_b128 v[%d:%d], v%d offset:%d" % (R + 32 + 4 * w, R + 32 + 4 * w + 3, vW1, LDS_O + (w0 + w) * OSTR + 2048))
            for w in range(n):
                e("s_waitcnt lgkmcnt(%d)" % (2 * n - 1 - w))
                for r in range(4):
                    if first and w == 0:
                        e("v_mov_b32 v%d, v%d" % (oacc + r, R + r))
                    else:
                        e("v_add_f32 v%d, v%d, v%d" % (oacc + r, oacc + r, R + 4 * w + r))
            for w in range(n):
                e("s_waitcnt lgkmcnt(%d)" % (n - 1 - w))
                for r in range(4):
                    if first and w == 0:
                        e("v_mov_b32 v%d, v%d" % (lacc + r, R + 32 + r))
                    else:
                        e("v_add_f32 v%d, v%d, v%d" % (lacc + r, lacc + r, R + 32 + 4 * w + r))
            first = False
        e("s_lshl_b32 s%d, s2, 12" % sT0)
        e("s_lshl_b32 s%d, s%d, 11" % (sT1, sWave))
        e("s_add_u32 s%d, s%d, s%d" % (sT0, sT0, sT1))
        e("v_lshlrev_b32 v%d, 4, v%d" % (vW0, vTmp))
        e("v_lshlrev_b32 v%d, 2, v%d" % (vW1, vTmp))
        e("buffer_store_dwordx4 v[%d:%d], v%d, s[%d:%d], s%d offen sc1" % (oacc, oacc + 3, vW0, rW, rW + 3, sT0))
        e("s_mov_b64 exec, 0xf")
        e("buffer_store_dword v%d, v%d, s[%d:%d], s%d offen offset:1024 sc1" % (vM, vW1, rW, rW + 3, sT0))
        e("s_mov_b64 exec, 1")
        e("buffer_store_dwordx4 v[%d:%d], v%d, s[%d:%d], s%d offen offset:1040 sc1" % (lacc, lacc + 3, vW0, rW, rW + 3, sT0))
        if 'noatom' in self.abl:
            e('s_endpgm')
        e("s_lshl_b32 s%d, s%d, 4" % (sT1, sWave))
        e("s_lshl_b32 s%d, 1, s%d" % (sEx, sT1))
        e("v_mov_b32 v16, s%d" % sEx)
        e("s_lshr_b32 s%d, s2, 2" % sEx)
        e("s_lshl_b32 s%d, s%d, 2" % (sEx, sEx))
        e("s_waitcnt vmcnt(0)")
        e("buffer_atomic_add v16, v%d, s[%d:%d], s%d offen sc0" % (vW0, rD, rD + 3, sEx))
        e("s_waitcnt vmcnt(0)")
        e("v_readfirstlane_b32 s%d, v16" % sEx)
        e("s_mov_b64 exec, -1")
        e("s_lshr_b32 s%d, s%d, s%d" % (sEx, sEx, sT1))
        e("s_and_b32 s%d, s%d, 0xffff" % (sEx, sEx))
        stamp()
        if 'stamp' in self.abl:
            e("s_cmp_eq_u32 s%d, 3" % sEx)
            e("s_cbranch_scc1 L_fin")
            stamp_store()
            e("s_endpgm")
            self.label("L_fin")
        e("s_cmp_lg_u32 s%d, 3" % sEx)
        e("s_cbranch_scc1 L_end")
        e("s_and_b32 s%d, s2, 0xfc" % sT0)
        e("s_lshl_b32 s%d, s%d, 12" % (sT0, sT0))
        e("s_lshl_b32 s%d, s%d, 11" % (sT1, sWave))
        e("s_add_u32 s%d, s%d, s%d" % (sT0, sT0, sT1))
        e("v_mov_b32 v%d, 0" % vW1)
        O = [R + 4 * k for k in range(4)]
        M = [R + 16 + 4 * k for k in range(4)]
        L = [R + 32 + 4 * k for k in range(4)]
        for k in range(4):
            e("buffer_load_dwordx4 v[%d:%d], v%d, s[%d:%d], s%d offen offset:1024 sc1" % (M[k], M[k] + 3, vW1, rW, rW + 3, sT0))
            e("buffer_load_dwordx4 v[%d:%d], v%d, s[%d:%d], s%d offen offset:1040 sc1" % (L[k], L[k] + 3, vW1, rW, rW + 3, sT0))
            e("buffer_load_dwordx4 v[%d:%d], v%d, s[%d:%d], s%d offen sc1" % (O[k], O[k] + 3, vW0, rW, rW + 3, sT0))
            if k < 3:
                e("s_add_u32 s%d, s%d, 4096" % (sT0, sT0))
        e("v_and_b32 v%d, 15, v%d" % (vW0, vTmp))
        e("v_lshlrev_b32 v%d, 4, v%d" % (vW0, vW0))
        e("v_lshrrev_b32 v%d, 4, v%d" % (vW1, vTmp))
        e("v_lshl_add_u32 v%d, v%d, 1, v%d" % (vW0, vW1, vW0))
        e("s_lshl_b32 s%d, s%d, 3" % (sT1, sWave))
        e("s_add_u32 s%d, s%d, s%d" % (sT2, sT2, sT1))
        e("s_waitcnt vmcnt(0)")
        T = 8
        for h in range(4):
            mx = T + h
            e("v_max3_f32 v%d, v%d, v%d, v%d" % (mx, M[0] + h, M[1] + h, M[2] + h))
            e("v_max_f32 v%d, v%d, v%d" % (mx, mx, M[3] + h))
            for k in range(4):
                e("v_sub_f32 v%d, v%d, v%d" % (M[k] + h, M[k] + h, mx))
                e("v_mul_f32 v%d, s%d, v%d" % (M[k] + h, sC, M[k] + h))
        for h in range(4):
            for k in range(4):
                e("v_exp_f32 v%d, v%d" % (M[k] + h, M[k] + h))
        e("s_nop 0")
        for h in range(4):
            e("v_mul_f32 v%d, v%d, v%d" % (T + h, M[0] + h, L[0] + h))
            e("v_mul_f32 v%d, v%d, v%d" % (T + 4 + h, M[0] + h, O[0] + h))
            for k in range(1, 4):
                e("v_fmac_f32 v%d, v%d, v%d" % (T + h, M[k] + h, L[k] + h))
                e("v_fmac_f32 v%d, v%d, v%d" % (T + 4 + h, M[k] + h, O[k] + h))
        for h in range(4):
            e("v_rcp_f32 v%d, v%d" % (T + h, T + h))
        e("s_nop 0")
        for h in range(4):
            e("v_mul_f32 v%d, v%d, v%d" % (T + 4 + h, T + 4 + h, T + h))
        for h in range(4):
            e("v_cvt_pk_bf16_f32 v%d, v%d, v%d" % (T + 4 + h, T + 4 + h, T + 4 + h))
        for h in range(4):
            e("buffer_store_short v%d, v%d, s[%d:%d], s%d offen offset:%d" % (T + 4 + h, vW0, rO, rO + 3, sT2, h * 256))
        if 'stamp' in self.abl:
            e("s_waitcnt vmcnt(0)")
            stamp()
            stamp_store()
        self.label("L_end")
        e("s_endpgm")

    def text(self):
        self.build()
        hdr = open("standalone__gqa_softmax__sampling.s.ref").read().split("; @launch")[0]
        out = hdr
        out += "; @launch grid=(256,1,1) block=(%d,1,1) lds=%d\n" % (self.NW * 64, self.lds_bytes)
        out += '.amdgcn_target "amdgcn-amd-amdhsa--gfx950"\n.text\n'
        k = self.name + "_kernel"
        out += ".globl %s\n.p2align 8\n.type %s,@function\n%s:\n" % (k, k, k)
        out += "\n".join(self.lines) + "\n"
        acc = (self.nvgpr + 3) // 4 * 4
        out += """.section .rodata,"a"
.p2align 6
.amdhsa_kernel %s
  .amdhsa_next_free_vgpr %d
  .amdhsa_next_free_sgpr 80
  .amdhsa_accum_offset %d
  .amdhsa_group_segment_fixed_size 0
  .amdhsa_kernarg_size 48
  .amdhsa_user_sgpr_count 2
  .amdhsa_user_sgpr_kernarg_segment_ptr 1
  .amdhsa_system_sgpr_workgroup_id_x 1
.end_amdhsa_kernel
""" % (k, self.nvgpr, acc)
        return out

if __name__ == "__main__":
    import argparse
    ap = argparse.ArgumentParser()
    ap.add_argument("--nw", type=int, default=16)
    ap.add_argument("--w", type=int, default=16)
    ap.add_argument("--ld", default=" nt")
    ap.add_argument("--il", type=int, default=1)
    ap.add_argument("--abl", default="")
    ap.add_argument("-o", default="standalone__gqa_softmax__sampling.s")
    a = ap.parse_args()
    g = Gen(NW=a.nw, W=a.w, ldflags=a.ld, interleave=bool(a.il), abl=a.abl)
    open(a.o, "w").write(g.text())
    print("vgprs", g.nvgpr, "lds", g.lds_bytes)
```

```python
import struct, sys, math

def f32hex(x):
    return "0x%08x" % struct.unpack("<I", struct.pack("<f", x))[0]

class Gen:
    def __init__(self, NW=16, W=16, nt=True, name="standalone__gqa_softmax__sampling", ldflags=None,
                 interleave=False, abl='', ldv=None):
        self.NW, self.W, self.nt = NW, W, nt
        self.name = name
        self.lines = []
        self.vm = []
        self.ldflags = ldflags if ldflags is not None else (" nt" if nt else "")
        self.interleave = interleave
        self.abl = abl
        self.ldv = ldv if ldv is not None else self.ldflags

    def e(self, s):
        self.lines.append("    " + s)

    def label(self, s):
        self.lines.append(s + ":")

    def c(self, s):
        self.lines.append("    ; " + s)

    def vmem(self, text, tag):
        self.e(text)
        self.vm.append(tag)

    def wait_vm(self, tag):
        idx = self.vm.index(tag)
        n = len(self.vm) - 1 - idx
        assert n <= 63, n
        self.e("s_waitcnt vmcnt(%d)" % n)

    def build(self):
        NW, W = self.NW, self.W
        KPW = 2048 // NW
        NL = KPW // 4
        NQ = KPW // 16
        NU = KPW // 32
        assert W % 8 == 0
        vTID = 0
        vKoff, vVoff, vTmp = 1, 2, 3
        vQ = 4
        vACC = 8
        vACCL = 40
        vA = 44
        vF = 48
        vM = 56
        vW0, vW1 = 57, 58
        vLds = 59
        vPK = 60
        if NQ <= 16:
            vS = 40
            vWIN = vPK + NU
        else:
            vS = vPK + NU
            vWIN = vS + NQ
        vWIN = (vWIN + 3) // 4 * 4
        nvgpr = vWIN + max(4 * W, 64)
        maxv = 512 // (NW // 4) if NW >= 4 else 512
        assert nvgpr <= min(256, maxv), (nvgpr, maxv)
        self.nvgpr = nvgpr
        def slot(x):
            r = vWIN + 4 * (x % W)
            return r
        sQp, sKp, sVp, sOp, sDp, sWp = 4, 6, 8, 10, 12, 14
        rK, rV, rQ, rW, rO, rD = 16, 20, 24, 28, 32, 36
        sOffK, sOffV = 40, 41
        sC, sLO, sHI = 42, 43, 44
        sT0, sT1, sT2 = 45, 46, 47
        sEx = 48
        sWave = 50
        LDS_M = 0
        LDS_O = 256
        OSTR = 2080
        lds_bytes = LDS_O + NW * OSTR
        self.lds_bytes = lds_bytes
        cval = math.log2(math.e) / math.sqrt(128.0)

        e = self.e
        self.nst = 0
        def stamp():
            if 'stamp' in self.abl:
                e("s_memrealtime s[%d:%d]" % (60 + 2 * self.nst, 61 + 2 * self.nst))
                self.nst += 1
        def stamp_store():
            if 'stamp' in self.abl:
                e("s_waitcnt lgkmcnt(0)")
                e("s_mov_b64 exec, 1")
                for i in range(8):
                    e("v_mov_b32 v%d, s%d" % (16 + i, 60 + 2 * i if i < self.nst else 60))
                e("s_lshl_b32 s%d, s2, %d" % (sT0, int(math.log2(NW)) + 5))
                e("s_lshl_b32 s%d, s%d, 5" % (sT1, sWave))
                e("s_add_u32 s%d, s%d, s%d" % (sT0, sT0, sT1))
                e("s_add_u32 s%d, s%d, 0x100000" % (sT0, sT0))
                e("v_mov_b32 v24, 0")
                e("buffer_store_dwordx4 v[16:19], v24, s[%d:%d], s%d offen" % (rW, rW + 3, sT0))
                e("buffer_store_dwordx4 v[20:23], v24, s[%d:%d], s%d offen offset:16" % (rW, rW + 3, sT0))
                e("s_mov_b64 exec, -1")
        stamp()
        e("s_cmp_ge_u32 s2, 256")
        e("s_cbranch_scc1 L_end")
        e("s_load_dwordx4 s[4:7], s[0:1], 0")
        e("s_load_dwordx4 s[8:11], s[0:1], 16")
        e("s_load_dwordx4 s[12:15], s[0:1], 32")
        e("v_and_b32 v%d, 63, v0" % vTmp)
        e("v_lshrrev_b32 v%d, 6, v0" % vLds)
        e("v_lshlrev_b32 v%d, 4, v%d" % (vVoff, vTmp))
        e("v_and_b32 v%d, 3, v0" % vKoff)
        e("v_lshlrev_b32 v%d, 4, v%d" % (vKoff, vKoff))
        e("v_bfe_u32 v%d, v0, 2, 2" % vW0)
        e("v_bfe_u32 v%d, v0, 4, 2" % vW1)
        e("v_lshl_add_u32 v%d, v%d, 8, v%d" % (vKoff, vW0, vKoff))
        e("v_lshl_add_u32 v%d, v%d, 6, v%d" % (vKoff, vW1, vKoff))
        e("v_and_b32 v%d, 3, v0" % vM)
        e("v_lshlrev_b32 v%d, 8, v%d" % (vM, vM))
        e("v_lshl_add_u32 v%d, v%d, 4, v%d" % (vM, vW0, vM))
        e("v_lshl_add_u32 v%d, v%d, 6, v%d" % (vM, vW1, vM))
        if not self.interleave:
            wsh = int(math.log2(KPW * 256))
            gstride = 4096
        else:
            wsh = 12
            gstride = 4096 * NW
        e("s_lshl_b32 s%d, s2, 19" % sT0)
        e("v_lshl_add_u32 v%d, v%d, %d, v%d" % (vKoff, vLds, wsh, vKoff))
        e("v_lshl_add_u32 v%d, v%d, %d, v%d" % (vVoff, vLds, wsh, vVoff))
        e("v_add_u32 v%d, s%d, v%d" % (vKoff, sT0, vKoff))
        e("v_add_u32 v%d, s%d, v%d" % (vVoff, sT0, vVoff))
        e("s_lshr_b32 s%d, s2, 2" % sT1)
        e("s_lshl_b32 s%d, s%d, 10" % (sT2, sT1))
        e("s_mov_b32 s%d, 0" % sOffK)
        e("s_mov_b32 s%d, 0" % sOffV)
        e("s_mov_b32 s%d, 0x8000000" % (rK + 2))
        e("s_mov_b32 s%d, 0x20000" % (rK + 3))
        e("s_mov_b32 s%d, 0x8000000" % (rV + 2))
        e("s_mov_b32 s%d, 0x20000" % (rV + 3))
        e("s_mov_b32 s%d, 0x10000" % (rQ + 2))
        e("s_mov_b32 s%d, 0x20000" % (rQ + 3))
        e("s_waitcnt lgkmcnt(0)")
        e("s_mov_b32 s%d, s%d" % (rK, sKp))
        e("s_and_b32 s%d, s%d, 0xffff" % (rK + 1, sKp + 1))
        e("s_mov_b32 s%d, s%d" % (rQ, sQp))
        e("s_and_b32 s%d, s%d, 0xffff" % (rQ + 1, sQp + 1))

        state = {"k": 0, "v": 0}
        def issue(x):
            r = slot(x)
            if x < NL:
                grp, j = divmod(x, 4)
                if grp != state["k"]:
                    e("s_add_u32 s%d, s%d, %d" % (sOffK, sOffK, gstride))
                    state["k"] = grp
                self.vmem("buffer_load_dwordx4 v[%d:%d], v%d, s[%d:%d], s%d offen offset:%d%s" %
                          (r, r + 3, vKoff, rK, rK + 3, sOffK, j * 1024, self.ldflags), ("ld", x))
            else:
                y = x - NL
                grp, j = divmod(y, 4)
                if grp != state["v"]:
                    e("s_add_u32 s%d, s%d, %d" % (sOffV, sOffV, gstride))
                    state["v"] = grp
                self.vmem("buffer_load_dwordx4 v[%d:%d], v%d, s[%d:%d], s%d offen offset:%d%s" %
                          (r, r + 3, vVoff, rV, rV + 3, sOffV, j * 1024, self.ldv), ("ld", x))

        self.vmem("buffer_load_dwordx4 v[%d:%d], v%d, s[%d:%d], s%d offen" % (vQ, vQ + 3, vM, rQ, rQ + 3, sT2), "q")
        e("s_mov_b32 s%d, s%d" % (rV, sVp))
        e("s_and_b32 s%d, s%d, 0xffff" % (rV + 1, sVp + 1))
        nxt = 0
        for x in range(min(W, 2 * NL)):
            issue(x); nxt += 1
        e("s_mov_b32 s%d, %s" % (sC, f32hex(cval)))
        e("s_mov_b32 s%d, 0x05040100" % sLO)
        e("s_mov_b32 s%d, 0x07060302" % sHI)
        e("s_mov_b32 s%d, s%d" % (rW, sWp))
        e("s_and_b32 s%d, s%d, 0xffff" % (rW + 1, sWp + 1))
        e("s_mov_b32 s%d, 0x200000" % (rW + 2))
        e("s_mov_b32 s%d, 0x20000" % (rW + 3))
        e("s_mov_b32 s%d, s%d" % (rO, sOp))
        e("s_and_b32 s%d, s%d, 0xffff" % (rO + 1, sOp + 1))
        e("s_mov_b32 s%d, 0x10000" % (rO + 2))
        e("s_mov_b32 s%d, 0x20000" % (rO + 3))
        e("s_mov_b32 s%d, s%d" % (rD, sDp))
        e("s_and_b32 s%d, s%d, 0xffff" % (rD + 1, sDp + 1))
        e("s_mov_b32 s%d, 0x100" % (rD + 2))
        e("s_mov_b32 s%d, 0x20000" % (rD + 3))
        e("v_readfirstlane_b32 s%d, v%d" % (sWave, vLds))

        def dpp_reduce(q):
            D = vACC + 16 * (q & 1)
            d = lambda j, r: D + 4 * j + r
            rot = "row_ror:12"
            for (w, j0) in ((vW0, 0), (vW1, 2)):
                e("v_add_f32_dpp v%d, v%d, v%d %s row_mask:0xf bank_mask:0x1" % (w, d(j0, 1), d(j0, 0), rot))
                e("v_add_f32_dpp v%d, v%d, v%d %s row_mask:0xf bank_mask:0x4" % (w, d(j0, 3), d(j0, 2), rot))
                e("v_add_f32_dpp v%d, v%d, v%d %s row_mask:0xf bank_mask:0x2" % (w, d(j0 + 1, 2), d(j0 + 1, 1), rot))
                e("v_add_f32_dpp v%d, v%d, v%d %s row_mask:0xf bank_mask:0x8" % (w, d(j0 + 1, 0), d(j0 + 1, 3), rot))
            e("v_add_f32_dpp v%d, v%d, v%d row_ror:8 row_mask:0xf bank_mask:0x3" % (vS + q, vW0, vW0))
            e("s_nop 0")
            e("v_add_f32_dpp v%d, v%d, v%d row_ror:8 row_mask:0xf bank_mask:0xc" % (vS + q, vW1, vW1))

        for q in range(NQ):
            self.c("K group %d" % q)
            D = vACC + 16 * (q & 1)
            self.wait_vm(("ld", 4 * q + 3))
            if q == 0:
                stamp()
            for j in range(4):
                r = slot(4 * q + j)
                e("v_mfma_f32_16x16x32_bf16 v[%d:%d], v[%d:%d], v[%d:%d], 0" %
                  (D + 4 * j, D + 4 * j + 3, r, r + 3, vQ, vQ + 3))
            for j in range(4):
                if nxt < 2 * NL:
                    issue(nxt); nxt += 1
            if q > 0:
                dpp_reduce(q - 1)
        e("s_nop 7")
        dpp_reduce(NQ - 1)
        e("v_max_f32 v%d, v%d, v%d" % (vM, vS, vS + 1))
        for q in range(2, NQ, 2):
            e("v_max3_f32 v%d, v%d, v%d, v%d" % (vM, vM, vS + q, vS + q + 1))

        def xlane_max(v, t):
            e("s_nop 1")
            e("v_max_f32_dpp v%d, v%d, v%d row_ror:4 row_mask:0xf bank_mask:0xf" % (v, v, v))
            e("s_nop 1")
            e("v_max_f32_dpp v%d, v%d, v%d row_ror:8 row_mask:0xf bank_mask:0xf" % (v, v, v))
            e("v_mov_b32 v%d, v%d" % (t, v))
            e("s_nop 1")
            e("v_permlane16_swap_b32 v%d, v%d" % (v, t))
            e("v_max_f32 v%d, v%d, v%d" % (v, v, t))
            e("v_mov_b32 v%d, v%d" % (t, v))
            e("s_nop 1")
            e("v_permlane32_swap_b32 v%d, v%d" % (v, t))
            e("v_max_f32 v%d, v%d, v%d" % (v, v, t))
        xlane_max(vM, vW0)
        e("v_and_b32 v%d, 3, v0" % vW1)
        e("v_lshlrev_b32 v%d, 2, v%d" % (vW1, vW1))
        e("v_lshl_add_u32 v%d, v%d, 4, v%d" % (vW1, vLds, vW1))
        e("ds_write_b32 v%d, v%d offset:%d" % (vW1, vM, LDS_M))
        e("v_lshlrev_b32 v%d, 2, v%d" % (vW1, vTmp))
        e("v_and_b32 v%d, %d, v%d" % (vW1, NW * 16 - 1, vW1))
        e("s_waitcnt lgkmcnt(0)")
        stamp()
        if 'nomid' not in self.abl:
            e("s_barrier")
        stamp()
        e("ds_read_b32 v%d, v%d offset:%d" % (vM, vW1, LDS_M))
        for r in range(4):
            e("v_mov_b32 v%d, 0x3f803f80" % (vQ + r))
        e("s_waitcnt lgkmcnt(0)")
        xlane_max(vM, vW0)
        e("v_mul_f32 v%d, s%d, v%d" % (vW1, sC, vM))
        for q in range(NQ):
            e("v_fma_f32 v%d, v%d, s%d, -v%d" % (vS + q, vS + q, sC, vW1))
        for q in range(NQ):
            e("v_exp_f32 v%d, v%d" % (vS + q, vS + q))
        e("s_nop 0")
        for u in range(NU):
            e("v_cvt_pk_bf16_f32 v%d, v%d, v%d" % (vPK + u, vS + 2 * u, vS + 2 * u + 1))

        for u in range(NU):
            self.c("V group %d" % u)
            e("v_mov_b32 v%d, v%d" % (vA, vPK + u))
            e("s_nop 0")
            e("v_mov_b32_dpp v%d, v%d row_ror:12 row_mask:0xf bank_mask:0xf" % (vA + 1, vPK + u))
            e("v_mov_b32_dpp v%d, v%d row_ror:8 row_mask:0xf bank_mask:0xf" % (vA + 2, vPK + u))
            e("v_mov_b32_dpp v%d, v%d row_ror:4 row_mask:0xf bank_mask:0xf" % (vA + 3, vPK + u))
            base = NL + 8 * u
            self.wait_vm(("ld", base + 7))
            def perms(i):
                F = vF + 4 * (i & 1)
                sel = sHI if (i & 1) else sLO
                for p in range(4):
                    lo = slot(base + p) + (i >> 1)
                    hi = slot(base + p + 4) + (i >> 1)
                    e("v_perm_b32 v%d, v%d, v%d, s%d" % (F + p, hi, lo, sel))
            def mf(i):
                F = vF + 4 * (i & 1)
                a = vACC + 4 * i
                cc = "0" if u == 0 else "v[%d:%d]" % (a, a + 3)
                e("v_mfma_f32_16x16x32_bf16 v[%d:%d], v[%d:%d], v[%d:%d], %s" % (a, a + 3, vA, vA + 3, F, F + 3, cc))
            perms(0)
            cc = "0" if u == 0 else "v[%d:%d]" % (vACCL, vACCL + 3)
            e("v_mfma_f32_16x16x32_bf16 v[%d:%d], v[%d:%d], v[%d:%d], %s" % (vACCL, vACCL + 3, vA, vA + 3, vQ, vQ + 3, cc))
            for i in range(8):
                if i + 1 < 8:
                    perms(i + 1)
                else:
                    for j in range(8):
                        if nxt < 2 * NL:
                            issue(nxt); nxt += 1
                    e("s_nop 1")
                mf(i)
        stamp()
        if 'noepi' in self.abl:
            e('s_endpgm')
        e("s_mul_i32 s%d, s%d, %d" % (sT0, sWave, OSTR))
        e("v_lshlrev_b32 v%d, 4, v%d" % (vW0, vTmp))
        e("v_add_u32 v%d, s%d, v%d" % (vW0, sT0, vW0))
        e("s_mov_b64 exec, 0xffff")
        e("s_nop 4")
        for i in range(8):
            e("ds_write_b128 v%d, v[%d:%d] offset:%d" % (vW0, vACC + 4 * i, vACC + 4 * i + 3, LDS_O + i * 256))
        e("s_mov_b64 exec, 1")
        e("ds_write_b128 v%d, v[%d:%d] offset:%d" % (vW0, vACCL, vACCL + 3, LDS_O + 2048))
        e("s_mov_b64 exec, -1")
        e("s_waitcnt lgkmcnt(0)")
        e("s_barrier")
        stamp()
        nst_save = self.nst
        if 'stamp' in self.abl:
            e("s_cmp_lt_u32 s%d, 2" % sWave)
            e("s_cbranch_scc1 L_red")
            stamp_store()
            e("s_endpgm")
            self.label("L_red")
        if 'nored' in self.abl:
            e('s_endpgm')
        e("s_cmp_ge_u32 s%d, 2" % sWave)
        e("s_cbranch_scc1 L_end")
        R = vWIN
        e("v_lshlrev_b32 v%d, 4, v0" % vW0)
        e("v_mov_b32 v%d, 0" % vW1)
        oacc, lacc = 8, 12
        first = True
        for w0 in range(0, NW, 8):
            n = min(8, NW - w0)
            for w in range(n):
                e("ds_read_b128 v[%d:%d], v%d offset:%d" % (R + 4 * w, R + 4 * w + 3, vW0, LDS_O + (w0 + w) * OSTR))
            for w in range(n):
                e("ds_read_b128 v[%d:%d], v%d offset:%d" % (R + 32 + 4 * w, R + 32 + 4 * w + 3, vW1, LDS_O + (w0 + w) * OSTR + 2048))
            for w in range(n):
                e("s_waitcnt lgkmcnt(%d)" % (2 * n - 1 - w))
                for r in range(4):
                    if first and w == 0:
                        e("v_mov_b32 v%d, v%d" % (oacc + r, R + r))
                    else:
                        e("v_add_f32 v%d, v%d, v%d" % (oacc + r, oacc + r, R + 4 * w + r))
            for w in range(n):
                e("s_waitcnt lgkmcnt(%d)" % (n - 1 - w))
                for r in range(4):
                    if first and w == 0:
                        e("v_mov_b32 v%d, v%d" % (lacc + r, R + 32 + r))
                    else:
                        e("v_add_f32 v%d, v%d, v%d" % (lacc + r, lacc + r, R + 32 + 4 * w + r))
            first = False
        e("s_lshl_b32 s%d, s2, 12" % sT0)
        e("s_lshl_b32 s%d, s%d, 11" % (sT1, sWave))
        e("s_add_u32 s%d, s%d, s%d" % (sT0, sT0, sT1))
        e("v_lshlrev_b32 v%d, 4, v%d" % (vW0, vTmp))
        e("v_lshlrev_b32 v%d, 2, v%d" % (vW1, vTmp))
        e("buffer_store_dwordx4 v[%d:%d], v%d, s[%d:%d], s%d offen sc1" % (oacc, oacc + 3, vW0, rW, rW + 3, sT0))
        e("s_mov_b64 exec, 0xf")
        e("buffer_store_dword v%d, v%d, s[%d:%d], s%d offen offset:1024 sc1" % (vM, vW1, rW, rW + 3, sT0))
        e("s_mov_b64 exec, 1")
        e("buffer_store_dwordx4 v[%d:%d], v%d, s[%d:%d], s%d offen offset:1040 sc1" % (lacc, lacc + 3, vW0, rW, rW + 3, sT0))
        if 'noatom' in self.abl:
            e('s_endpgm')
        e("s_lshl_b32 s%d, s%d, 4" % (sT1, sWave))
        e("s_lshl_b32 s%d, 1, s%d" % (sEx, sT1))
        e("v_mov_b32 v16, s%d" % sEx)
        e("s_lshr_b32 s%d, s2, 2" % sEx)
        e("s_lshl_b32 s%d, s%d, 2" % (sEx, sEx))
        e("s_waitcnt vmcnt(0)")
        e("buffer_atomic_add v16, v%d, s[%d:%d], s%d offen sc0" % (vW0, rD, rD + 3, sEx))
        e("s_waitcnt vmcnt(0)")
        e("v_readfirstlane_b32 s%d, v16" % sEx)
        e("s_mov_b64 exec, -1")
        e("s_lshr_b32 s%d, s%d, s%d" % (sEx, sEx, sT1))
        e("s_and_b32 s%d, s%d, 0xffff" % (sEx, sEx))
        stamp()
        if 'stamp' in self.abl:
            e("s_cmp_eq_u32 s%d, 3" % sEx)
            e("s_cbranch_scc1 L_fin")
            stamp_store()
            e("s_endpgm")
            self.label("L_fin")
        e("s_cmp_lg_u32 s%d, 3" % sEx)
        e("s_cbranch_scc1 L_end")
        e("s_and_b32 s%d, s2, 0xfc" % sT0)
        e("s_lshl_b32 s%d, s%d, 12" % (sT0, sT0))
        e("s_lshl_b32 s%d, s%d, 11" % (sT1, sWave))
        e("s_add_u32 s%d, s%d, s%d" % (sT0, sT0, sT1))
        e("v_mov_b32 v%d, 0" % vW1)
        O = [R + 4 * k for k in range(4)]
        M = [R + 16 + 4 * k for k in range(4)]
        L = [R + 32 + 4 * k for k in range(4)]
        for k in range(4):
            e("buffer_load_dwordx4 v[%d:%d], v%d, s[%d:%d], s%d offen offset:1024 sc1" % (M[k], M[k] + 3, vW1, rW, rW + 3, sT0))
            e("buffer_load_dwordx4 v[%d:%d], v%d, s[%d:%d], s%d offen offset:1040 sc1" % (L[k], L[k] + 3, vW1, rW, rW + 3, sT0))
            e("buffer_load_dwordx4 v[%d:%d], v%d, s[%d:%d], s%d offen sc1" % (O[k], O[k] + 3, vW0, rW, rW + 3, sT0))
            if k < 3:
                e("s_add_u32 s%d, s%d, 4096" % (sT0, sT0))
        e("v_and_b32 v%d, 15, v%d" % (vW0, vTmp))
        e("v_lshlrev_b32 v%d, 4, v%d" % (vW0, vW0))
        e("v_lshrrev_b32 v%d, 4, v%d" % (vW1, vTmp))
        e("v_lshl_add_u32 v%d, v%d, 1, v%d" % (vW0, vW1, vW0))
        e("s_lshl_b32 s%d, s%d, 3" % (sT1, sWave))
        e("s_add_u32 s%d, s%d, s%d" % (sT2, sT2, sT1))
        e("s_waitcnt vmcnt(0)")
        T = 8
        for h in range(4):
            mx = T + h
            e("v_max3_f32 v%d, v%d, v%d, v%d" % (mx, M[0] + h, M[1] + h, M[2] + h))
            e("v_max_f32 v%d, v%d, v%d" % (mx, mx, M[3] + h))
            for k in range(4):
                e("v_sub_f32 v%d, v%d, v%d" % (M[k] + h, M[k] + h, mx))
                e("v_mul_f32 v%d, s%d, v%d" % (M[k] + h, sC, M[k] + h))
        for h in range(4):
            for k in range(4):
                e("v_exp_f32 v%d, v%d" % (M[k] + h, M[k] + h))
        e("s_nop 0")
        for h in range(4):
            e("v_mul_f32 v%d, v%d, v%d" % (T + h, M[0] + h, L[0] + h))
            e("v_mul_f32 v%d, v%d, v%d" % (T + 4 + h, M[0] + h, O[0] + h))
            for k in range(1, 4):
                e("v_fmac_f32 v%d, v%d, v%d" % (T + h, M[k] + h, L[k] + h))
                e("v_fmac_f32 v%d, v%d, v%d" % (T + 4 + h, M[k] + h, O[k] + h))
        for h in range(4):
            e("v_rcp_f32 v%d, v%d" % (T + h, T + h))
        e("s_nop 0")
        for h in range(4):
            e("v_mul_f32 v%d, v%d, v%d" % (T + 4 + h, T + 4 + h, T + h))
        for h in range(4):
            e("v_cvt_pk_bf16_f32 v%d, v%d, v%d" % (T + 4 + h, T + 4 + h, T + 4 + h))
        for h in range(4):
            e("buffer_store_short v%d, v%d, s[%d:%d], s%d offen offset:%d" % (T + 4 + h, vW0, rO, rO + 3, sT2, h * 256))
        if 'stamp' in self.abl:
            e("s_waitcnt vmcnt(0)")
            stamp()
            stamp_store()
        self.label("L_end")
        e("s_endpgm")

    def text(self):
        self.build()
        hdr = open("standalone__gqa_softmax__sampling.s.ref").read().split("; @launch")[0]
        out = hdr
        out += "; @launch grid=(256,1,1) block=(%d,1,1) lds=%d\n" % (self.NW * 64, self.lds_bytes)
        out += '.amdgcn_target "amdgcn-amd-amdhsa--gfx950"\n.text\n'
        k = self.name + "_kernel"
        out += ".globl %s\n.p2align 8\n.type %s,@function\n%s:\n" % (k, k, k)
        out += "\n".join(self.lines) + "\n"
        acc = (self.nvgpr + 3) // 4 * 4
        out += """.section .rodata,"a"
.p2align 6
.amdhsa_kernel %s
  .amdhsa_next_free_vgpr %d
  .amdhsa_next_free_sgpr 80
  .amdhsa_accum_offset %d
  .amdhsa_group_segment_fixed_size 0
  .amdhsa_kernarg_size 48
  .amdhsa_user_sgpr_count 2
  .amdhsa_user_sgpr_kernarg_segment_ptr 1
  .amdhsa_system_sgpr_workgroup_id_x 1
.end_amdhsa_kernel
""" % (k, self.nvgpr, acc)
        return out

if __name__ == "__main__":
    import argparse
    ap = argparse.ArgumentParser()
    ap.add_argument("--nw", type=int, default=16)
    ap.add_argument("--w", type=int, default=16)
    ap.add_argument("--ld", default=" nt")
    ap.add_argument("--il", type=int, default=1)
    ap.add_argument("--abl", default="")
    ap.add_argument("--ldv", default=None)
    ap.add_argument("-o", default="standalone__gqa_softmax__sampling.s")
    a = ap.parse_args()
    g = Gen(NW=a.nw, W=a.w, ldflags=a.ld, interleave=bool(a.il), abl=a.abl, ldv=a.ldv)
    open(a.o, "w").write(g.text())
    print("vgprs", g.nvgpr, "lds", g.lds_bytes)
```

```python
import struct, sys, math, argparse

def f32hex(x):
    return "0x%08x" % struct.unpack("<I", struct.pack("<f", x))[0]

class Gen:
    def __init__(self, W1=5, W2=8, frac=0.7, NS=24, ld=" nt", abl="", tick=0.86, role=0.93, W0=None, per_gap=1, pf=0,
                 name="standalone__gqa_softmax__sampling"):
        self.W1, self.W2, self.frac, self.NS = W1, W2, frac, NS
        self.W0 = W0
        self.ld, self.abl, self.name = ld, abl, name
        self.tick, self.role = tick, role
        self.per_gap = per_gap
        self.pf = pf
        self.lines = []
        self.vm = []

    def e(self, s): self.lines.append("    " + s)
    def label(self, s): self.lines.append(s + ":")
    def c(self, s): self.lines.append("    ; " + s)
    def vmem(self, text, tag):
        self.e(text); self.vm.append(tag)
    def outstanding_after(self, tag):
        return len(self.vm) - 1 - self.vm.index(tag)
    def wait_vm(self, tag):
        n = self.outstanding_after(tag)
        assert n <= 63
        if self.known >= self.vm.index(tag):
            return
        self.e("s_waitcnt vmcnt(%d)" % n)
        self.known = self.vm.index(tag)
    def wait_cnt(self, n):
        idx = len(self.vm) - 1 - n
        if idx >= 0 and self.known < idx:
            self.e("s_waitcnt vmcnt(%d)" % n)
            self.known = idx
    def landed(self, tag):
        return tag in self.vm and self.vm.index(tag) <= self.known

    def build(self):
        NW = 4
        KPW = 512
        NL = KPW // 4
        NQ = KPW // 16
        NU = KPW // 32
        NS = self.NS
        self.known = -1
        e = self.e
        vKoff, vVoff, vLane = 1, 2, 3
        vQ = 4
        vACC = 8
        vACCL = 40
        vA = 44
        vF = 48
        vM, vW0, vW1, vT = 56, 57, 58, 59
        vNM = 60
        vP0, vP1 = 61, 62
        vZ = 64
        vRem = 68
        vS = 80
        vWIN = 112
        nvgpr = vWIN + 4 * NS
        assert nvgpr <= 256
        self.nvgpr = nvgpr
        slot = lambda x: vWIN + 4 * (x % NS)
        rK, rV, rQ, rW, rO = 16, 20, 24, 28, 32
        sOffK, sOffV = 36, 37
        sC, sLO, sHI = 38, 39, 40
        sT0, sT1, sT2 = 41, 42, 43
        sWave, sTick, sRole = 44, 45, 46
        sRemOff = 47
        sUse = 50
        sOwn = 53
        sCnt = 54
        sD = 12
        LDS_ROLE = 0
        LDS_M = 64
        LDS_O = 128
        OSTR = 2064
        self.lds_bytes = LDS_O + NW * OSTR
        cval = math.log2(math.e) / math.sqrt(128.0)
        WSZ = 0x100000 if 'stamp' not in self.abl else 0x200000
        OOB = 0x7000000

        self.nst = 0
        def stamp():
            if 'stamp' in self.abl:
                e("s_memrealtime s[%d:%d]" % (60 + 2 * self.nst, 61 + 2 * self.nst))
                self.nst += 1
        def stamp_store():
            if 'stamp' in self.abl:
                e("s_waitcnt lgkmcnt(0)")
                e("s_mov_b64 exec, 1")
                for i in range(8):
                    e("v_mov_b32 v%d, s%d" % (16 + i, 60 + 2 * i if i < self.nst else 60))
                e("s_lshl_b32 s%d, s2, 7" % sT0)
                e("s_lshl_b32 s%d, s%d, 5" % (sT1, sWave))
                e("s_add_u32 s%d, s%d, s%d" % (sT0, sT0, sT1))
                e("s_add_u32 s%d, s%d, 0x100000" % (sT0, sT0))
                e("v_mov_b32 v24, 0")
                e("buffer_store_dwordx4 v[16:19], v24, s[%d:%d], s%d offen" % (rW, rW + 3, sT0))
                e("buffer_store_dwordx4 v[20:23], v24, s[%d:%d], s%d offen offset:16" % (rW, rW + 3, sT0))
                e("s_mov_b64 exec, -1")

        stamp()
        e("s_load_dwordx4 s[4:7], s[0:1], 0")
        e("s_load_dwordx4 s[8:11], s[0:1], 16")
        e("s_load_dwordx4 s[12:15], s[0:1], 32")
        e("s_cmp_ge_u32 s2, 256")
        e("s_cbranch_scc1 L_end")
        e("v_and_b32 v%d, 63, v0" % vLane)
        e("v_lshrrev_b32 v%d, 6, v0" % vT)
        e("v_and_b32 v%d, 3, v0" % vW1)
        e("v_bfe_u32 v%d, v0, 2, 2" % vW0)
        e("v_bfe_u32 v%d, v0, 4, 2" % vNM)
        e("v_lshlrev_b32 v%d, 6, v%d" % (vNM, vNM))
        e("v_readfirstlane_b32 s%d, v%d" % (sWave, vT))
        e("v_lshl_add_u32 v%d, v%d, 4, v%d" % (vKoff, vW1, vNM))
        e("v_lshl_add_u32 v%d, v%d, 8, v%d" % (vKoff, vW0, vKoff))
        e("v_lshl_add_u32 v%d, v%d, 8, v%d" % (vM, vW1, vNM))
        e("v_lshl_add_u32 v%d, v%d, 4, v%d" % (vM, vW0, vM))
        e("v_lshlrev_b32 v%d, 4, v%d" % (vVoff, vLane))
        e("s_lshl_b32 s%d, s2, 19" % sOffK)
        e("s_lshl_b32 s%d, s%d, 12" % (sT0, sWave))
        e("s_add_u32 s%d, s%d, s%d" % (sOffK, sOffK, sT0))
        e("s_mov_b32 s%d, s%d" % (sOffV, sOffK))
        e("s_lshr_b32 s%d, s2, 2" % sT1)
        e("s_lshl_b32 s%d, s%d, 10" % (sT2, sT1))
        e("s_mov_b32 s%d, 0x8000000" % (rK + 2))
        e("s_mov_b32 s%d, 0x20000" % (rK + 3))
        e("s_mov_b32 s%d, 0x10000" % (rQ + 2))
        e("s_mov_b32 s%d, 0x20000" % (rQ + 3))
        e("s_waitcnt lgkmcnt(0)")
        e("s_mov_b32 s%d, s6" % rK)
        e("s_and_b32 s%d, s7, 0xffff" % (rK + 1))
        e("s_mov_b32 s%d, s4" % rQ)
        e("s_and_b32 s%d, s5, 0xffff" % (rQ + 1))
        gstride = 4096 * NW
        st = {"k": 0, "v": 0}
        def issue(x):
            r = slot(x)
            if x < NL:
                grp, j = divmod(x, 4)
                if grp != st["k"]:
                    e("s_add_u32 s%d, s%d, %d" % (sOffK, sOffK, gstride)); st["k"] = grp
                self.vmem("buffer_load_dwordx4 v[%d:%d], v%d, s[%d:%d], s%d offen offset:%d%s" %
                          (r, r + 3, vKoff, rK, rK + 3, sOffK, j * 1024, self.ld), ("ld", x))
            else:
                grp, j = divmod(x - NL, 4)
                if grp != st["v"]:
                    e("s_add_u32 s%d, s%d, %d" % (sOffV, sOffV, gstride)); st["v"] = grp
                self.vmem("buffer_load_dwordx4 v[%d:%d], v%d, s[%d:%d], s%d offen offset:%d%s" %
                          (r, r + 3, vVoff, rV, rV + 3, sOffV, j * 1024, self.ld), ("ld", x))
        def window(x):
            if self.W0 is not None and x < self.W0:
                return self.W0
            return self.W1 if x < self.frac * 2 * NL else self.W2

        bundles = []
        D = vACC
        def mkA(q):
            def f():
                for j in range(4):
                    r = slot(4 * q + j)
                    e("v_mfma_f32_16x16x32_bf16 v[%d:%d], v[%d:%d], v[%d:%d], 0" %
                      (D + 4 * j, D + 4 * j + 3, r, r + 3, vQ, vQ + 3))
                e("s_nop 4")
            return f
        def mkB(q):
            def f():
                d = lambda j, r: D + 4 * j + r
                rot = "row_ror:12"
                e("s_nop 2")
                for (w, j0) in ((vW0, 0), (vW1, 2)):
                    e("v_add_f32_dpp v%d, v%d, v%d %s row_mask:0xf bank_mask:0x1" % (w, d(j0, 1), d(j0, 0), rot))
                    e("v_add_f32_dpp v%d, v%d, v%d %s row_mask:0xf bank_mask:0x4" % (w, d(j0, 3), d(j0, 2), rot))
                    e("v_add_f32_dpp v%d, v%d, v%d %s row_mask:0xf bank_mask:0x2" % (w, d(j0 + 1, 2), d(j0 + 1, 1), rot))
                    e("v_add_f32_dpp v%d, v%d, v%d %s row_mask:0xf bank_mask:0x8" % (w, d(j0 + 1, 0), d(j0 + 1, 3), rot))
                e("v_add_f32_dpp v%d, v%d, v%d row_ror:8 row_mask:0xf bank_mask:0x3" % (vS + q, vW0, vW0))
                e("s_nop 0")
                e("v_add_f32_dpp v%d, v%d, v%d row_ror:8 row_mask:0xf bank_mask:0xc" % (vS + q, vW1, vW1))
                if q == 0:
                    e("v_mov_b32 v%d, v%d" % (vM, vS))
                else:
                    e("v_max_f32 v%d, v%d, v%d" % (vM, vM, vS + q))
            return f
        def xlane_max(v, t):
            e("s_nop 1")
            e("v_max_f32_dpp v%d, v%d, v%d row_ror:4 row_mask:0xf bank_mask:0xf" % (v, v, v))
            e("s_nop 1")
            e("v_max_f32_dpp v%d, v%d, v%d row_ror:8 row_mask:0xf bank_mask:0xf" % (v, v, v))
            e("v_mov_b32 v%d, v%d" % (t, v))
            e("s_nop 1")
            e("v_permlane16_swap_b32 v%d, v%d" % (v, t))
            e("v_max_f32 v%d, v%d, v%d" % (v, v, t))
            e("v_mov_b32 v%d, v%d" % (t, v))
            e("s_nop 1")
            e("v_permlane32_swap_b32 v%d, v%d" % (v, t))
            e("v_max_f32 v%d, v%d, v%d" % (v, v, t))
        def trans():
            stamp()
            xlane_max(vM, vW0)
            e("v_mul_f32 v%d, s%d, v%d" % (vNM, sC, vM))
            for r in range(4):
                e("v_mov_b32 v%d, 0x3f803f80" % (vQ + r))
        def mkP(u):
            def f():
                e("v_fma_f32 v%d, v%d, s%d, -v%d" % (vP0, vS + 2 * u, sC, vNM))
                e("v_fma_f32 v%d, v%d, s%d, -v%d" % (vP1, vS + 2 * u + 1, sC, vNM))
                e("v_exp_f32 v%d, v%d" % (vP0, vP0))
                e("v_exp_f32 v%d, v%d" % (vP1, vP1))
                e("s_nop 0")
                e("v_cvt_pk_bf16_f32 v%d, v%d, v%d" % (vA, vP0, vP1))
                e("s_nop 1")
                e("v_mov_b32_dpp v%d, v%d row_ror:12 row_mask:0xf bank_mask:0xf" % (vA + 1, vA))
                e("v_mov_b32_dpp v%d, v%d row_ror:8 row_mask:0xf bank_mask:0xf" % (vA + 2, vA))
                e("v_mov_b32_dpp v%d, v%d row_ror:4 row_mask:0xf bank_mask:0xf" % (vA + 3, vA))
                e("s_nop 1")
                cc = "0" if u == 0 else "v[%d:%d]" % (vACCL, vACCL + 3)
                e("v_mfma_f32_16x16x32_bf16 v[%d:%d], v[%d:%d], v[%d:%d], %s" % (vACCL, vACCL + 3, vA, vA + 3, vQ, vQ + 3, cc))
            return f
        def mkC(u, half):
            base = NL + 8 * u
            def perms(i):
                F = vF + 4 * (i & 1)
                sel = sHI if (i & 1) else sLO
                for p in range(4):
                    e("v_perm_b32 v%d, v%d, v%d, s%d" % (F + p, slot(base + p + 4) + (i >> 1), slot(base + p) + (i >> 1), sel))
            def mf(i):
                F = vF + 4 * (i & 1)
                a = vACC + 4 * i
                cc = "0" if u == 0 else "v[%d:%d]" % (a, a + 3)
                e("v_mfma_f32_16x16x32_bf16 v[%d:%d], v[%d:%d], v[%d:%d], %s" % (a, a + 3, vA, vA + 3, F, F + 3, cc))
            def f():
                i0 = 4 * half
                perms(i0); perms(i0 + 1); mf(i0); perms(i0 + 2); mf(i0 + 1); perms(i0 + 3); mf(i0 + 2)
                e("s_nop 0")
                mf(i0 + 3)
            return f
        for q in range(NQ):
            bundles.append(("A%d" % q, ("ld", 4 * q + 3), list(range(4 * q, 4 * q + 4)), mkA(q)))
            bundles.append(("B%d" % q, None, [], mkB(q)))
        bundles.append(("T", None, [], trans))
        for u in range(NU):
            bundles.append(("P%d" % u, None, [], mkP(u)))
            bundles.append(("C%d_0" % u, ("ld", NL + 8 * u + 7), [], mkC(u, 0)))
            bundles.append(("C%d_1" % u, None, list(range(NL + 8 * u, NL + 8 * u + 8)), mkC(u, 1)))

        def ev_setup():
            e("s_mov_b32 s%d, s8" % rV)
            e("s_and_b32 s%d, s9, 0xffff" % (rV + 1))
            e("s_mov_b32 s%d, 0x8000000" % (rV + 2))
            e("s_mov_b32 s%d, 0x20000" % (rV + 3))
            e("s_mov_b32 s%d, %s" % (sC, f32hex(cval)))
            e("s_mov_b32 s%d, 0x05040100" % sLO)
            e("s_mov_b32 s%d, 0x07060302" % sHI)
            e("s_mov_b32 s%d, s14" % rW)
            e("s_and_b32 s%d, s15, 0xffff" % (rW + 1))
            e("s_mov_b32 s%d, 0x%x" % (rW + 2, WSZ))
            e("s_mov_b32 s%d, 0x20000" % (rW + 3))
            e("s_mov_b32 s%d, s10" % rO)
            e("s_and_b32 s%d, s11, 0xffff" % (rO + 1))
            e("s_mov_b32 s%d, 0x10000" % (rO + 2))
            e("s_mov_b32 s%d, 0x20000" % (rO + 3))
            e("s_lshl_b32 s%d, s%d, 2" % (sT1, sT1))
            e("s_add_u32 s12, s12, s%d" % sT1)
            e("s_addc_u32 s13, s13, 0")
            e("s_lshl_b32 s%d, s%d, 10" % (sT0, sWave))
            e("s_lshl_b32 s%d, s2, 12" % sOwn)
            e("s_add_u32 s%d, s%d, s%d" % (sOwn, sOwn, sT0))
            for k in range(1, 4):
                e("s_add_u32 s%d, s2, %d" % (sT1, k))
                e("s_and_b32 s%d, s%d, 3" % (sT1, sT1))
                e("s_and_b32 s%d, s2, 0xfc" % sCnt)
                e("s_or_b32 s%d, s%d, s%d" % (sT1, sT1, sCnt))
                e("s_lshl_b32 s%d, s%d, 12" % (sT1, sT1))
                e("s_add_u32 s%d, s%d, s%d" % (sRemOff + k - 1, sT1, sT0))
            for r in range(4):
                e("v_mov_b32 v%d, 0" % (vZ + r))
            e("s_lshl_b32 s%d, s2, 12" % sT0)
            e("s_cmp_eq_u32 s%d, %d" % (sWave, 0 if 'noclr' not in self.abl else 9))
            e("s_cselect_b32 s%d, s%d, 0x%x" % (sT0, sT0, OOB))
            for r in range(4):
                self.vmem("buffer_store_dwordx4 v[%d:%d], v%d, s[%d:%d], s%d offen offset:%d sc1" %
                          (vZ, vZ + 3, vVoff, rW, rW + 3, sT0, r * 1024), ("clr", r))
            e("ds_write_b32 v%d, v%d offset:%d" % (vZ, vZ, LDS_ROLE))
            e("s_waitcnt lgkmcnt(0)")
            if 'nobar0' not in self.abl:
                e("s_barrier")
        def ev_ticket():
            assert self.landed(("clr", 3))
            e("s_cmp_lg_u32 s%d, 0" % sWave)
            e("s_cbranch_scc1 L_notick")
            e("s_mov_b32 s%d, 1" % sTick)
            e("s_atomic_add s%d, s[12:13], 0 glc" % sTick)
            self.label("L_notick")
        def ev_role():
            e("s_cmp_lg_u32 s%d, 0" % sWave)
            e("s_cbranch_scc1 L_norole")
            e("s_waitcnt lgkmcnt(0)")
            e("s_add_u32 s%d, s%d, 1" % (sTick, sTick))
            e("v_mov_b32 v%d, s%d" % (vT, sTick))
            e("ds_write_b32 v%d, v%d offset:%d" % (vZ, vT, LDS_ROLE))
            self.label("L_norole")
        def rem_loads():
            for k in range(3):
                self.vmem("buffer_load_dwordx4 v[%d:%d], v%d, s[%d:%d], s%d offen sc1" %
                          (vRem + 4 * k, vRem + 4 * k + 3, vVoff, rW, rW + 3, sUse + k), ("rem", k, len(self.vm)))
        def ev_prefetch_a():
            e("ds_read_b32 v%d, v%d offset:%d" % (vT, vZ, LDS_ROLE))
        def ev_prefetch_b():
            e("s_waitcnt lgkmcnt(0)")
            e("v_readfirstlane_b32 s%d, v%d" % (sRole, vT))
            e("s_cmp_eq_u32 s%d, 4" % sRole)
            for k in range(3):
                e("s_cselect_b32 s%d, s%d, 0x%x" % (sUse + k, sRemOff + k, OOB))
            rem_loads()
        TOT = 2 * NL
        events = {int(self.tick * TOT): ev_ticket, int(self.role * TOT): ev_role}

        self.vmem("buffer_load_dwordx4 v[%d:%d], v%d, s[%d:%d], s%d offen" % (vQ, vQ + 3, vM, rQ, rQ + 3, sT2), "q")
        freed = set()
        bi = 0
        def emit_bundle(force):
            nonlocal bi
            name, need, frees, fn = bundles[bi]
            if need is not None and not self.landed(need):
                if not force:
                    return False
                self.wait_vm(need)
            self.c(name)
            if not ('nocomp' in self.abl and name != 'T'):
                fn()
            freed.update(frees)
            bi += 1
            return True
        first = window(0)
        for x in range(TOT):
            while x >= NS and (x - NS) not in freed:
                emit_bundle(True)
            w = window(x)
            if x - w >= 0:
                self.wait_vm(("ld", x - w))
                if x - w == 3:
                    stamp()
            issue(x)
            if x == first - 1:
                ev_setup()
            if x in events:
                events[x]()
            n = 0
            while bi < len(bundles) and n < self.per_gap and emit_bundle(False):
                n += 1
        while bi < len(bundles):
            if bi == len(bundles) - 2:
                self.wait_vm(bundles[bi][1])
                ev_prefetch_a()
            emit_bundle(True)
            if bi == len(bundles) - self.pf:
                ev_prefetch_b()
        stamp()
        e("s_mul_i32 s%d, s%d, %d" % (sT0, sWave, OSTR))
        e("v_add_u32 v%d, s%d, v%d" % (vW0, sT0, vVoff))
        e("v_lshlrev_b32 v%d, 2, v%d" % (vW1, vLane))
        e("s_lshl_b32 s%d, s%d, 4" % (sT1, sWave))
        e("v_add_u32 v%d, s%d, v%d" % (vW1, sT1, vW1))
        e("s_mov_b64 exec, 0xf")
        e("ds_write_b32 v%d, v%d offset:%d" % (vW1, vNM, LDS_M))
        e("s_mov_b64 exec, 1")
        e("ds_write_b128 v%d, v[%d:%d] offset:%d" % (vW0, vACCL, vACCL + 3, LDS_O + 2048))
        e("s_mov_b64 exec, 0xffff")
        for i in range(8):
            e("ds_write_b128 v%d, v[%d:%d] offset:%d" % (vW0, vACC + 4 * i, vACC + 4 * i + 3, LDS_O + i * 256))
        e("s_mov_b64 exec, -1")
        e("v_lshlrev_b32 v%d, 3, v0" % vW0)
        e("v_and_b32 v%d, 1, v0" % vW1)
        e("v_lshlrev_b32 v%d, 3, v%d" % (vW1, vW1))
        e("s_waitcnt lgkmcnt(0)")
        e("s_barrier")
        stamp()
        R = vS
        mm = lambda w: R + 2 * w
        ll = lambda w: R + 8 + 2 * w
        oo = lambda w: R + 16 + 2 * w
        e("ds_read_b32 v%d, v%d offset:%d" % (vT, vZ, LDS_ROLE))
        for w in range(4):
            e("ds_read_b64 v[%d:%d], v%d offset:%d" % (mm(w), mm(w) + 1, vW1, LDS_M + w * 16))
        for w in range(4):
            e("ds_read_b64 v[%d:%d], v%d offset:%d" % (ll(w), ll(w) + 1, vW1, LDS_O + w * OSTR + 2048))
        for w in range(4):
            e("ds_read_b64 v[%d:%d], v%d offset:%d" % (oo(w), oo(w) + 1, vW0, LDS_O + w * OSTR))
        X = 8
        Mx, Ls = 12, 14
        e("s_waitcnt lgkmcnt(8)")
        e("v_readfirstlane_b32 s%d, v%d" % (sRole, vT))
        for h in range(2):
            e("v_max3_f32 v%d, v%d, v%d, v%d" % (Mx + h, mm(0) + h, mm(1) + h, mm(2) + h))
        for h in range(2):
            e("v_max_f32 v%d, v%d, v%d" % (Mx + h, Mx + h, mm(3) + h))
        for w in range(4):
            for h in range(2):
                e("v_sub_f32 v%d, v%d, v%d" % (mm(w) + h, mm(w) + h, Mx + h))
        for w in range(4):
            for h in range(2):
                e("v_exp_f32 v%d, v%d" % (mm(w) + h, mm(w) + h))
        e("s_waitcnt lgkmcnt(0)")
        for h in range(2):
            e("v_mul_f32 v%d, v%d, v%d" % (Ls + h, mm(0) + h, ll(0) + h))
            e("v_mul_f32 v%d, v%d, v%d" % (X + h, mm(0) + h, oo(0) + h))
        for w in range(1, 4):
            for h in range(2):
                e("v_fmac_f32 v%d, v%d, v%d" % (Ls + h, mm(w) + h, ll(w) + h))
                e("v_fmac_f32 v%d, v%d, v%d" % (X + h, mm(w) + h, oo(w) + h))
        for h in range(2):
            e("v_log_f32 v%d, v%d" % (X + 2 + h, Ls + h))
        for h in range(2):
            e("v_rcp_f32 v%d, v%d" % (Ls + h, Ls + h))
        for h in range(2):
            e("v_add_f32 v%d, v%d, v%d" % (X + 2 + h, X + 2 + h, Mx + h))
        for h in range(2):
            e("v_mul_f32 v%d, v%d, v%d" % (X + h, X + h, Ls + h))
        e("s_cmp_eq_u32 s%d, 4" % sRole)
        e("s_cbranch_scc1 L_comb")
        for r in range(4):
            e("v_or_b32 v%d, 1, v%d" % (X + r, X + r))
        e("buffer_store_dwordx4 v[%d:%d], v%d, s[%d:%d], s%d offen sc1" % (X, X + 3, vVoff, rW, rW + 3, sOwn))
        if 'stamp' in self.abl:
            sv = self.nst
            stamp(); stamp()
            stamp_store()
            self.nst = sv
        e("s_endpgm")
        self.label("L_comb")
        e("v_lshrrev_b32 v%d, 1, v0" % vW0)
        e("v_and_b32 v%d, 15, v%d" % (vT, vW0))
        e("v_lshrrev_b32 v%d, 4, v%d" % (vW0, vW0))
        e("v_lshlrev_b32 v%d, 1, v%d" % (vW0, vW0))
        e("v_lshl_add_u32 v%d, v%d, 4, v%d" % (vW0, vT, vW0))
        e("v_lshl_add_u32 v%d, v%d, 6, v%d" % (vW0, vW1, vW0))
        e("s_mov_b32 s%d, 0" % sCnt)
        self.label("L_chk")
        e("s_waitcnt vmcnt(0)")
        e("v_and_b32 v%d, v%d, v%d" % (vT, vRem, vRem + 1))
        for r in range(2, 12):
            e("v_and_b32 v%d, v%d, v%d" % (vT, vT, vRem + r))
        e("v_and_b32 v%d, 1, v%d" % (vT, vT))
        e("v_cmp_ne_u32 vcc, 1, v%d" % vT)
        e("s_cbranch_vccz L_ok")
        e("s_add_u32 s%d, s%d, 1" % (sCnt, sCnt))
        e("s_cmp_gt_u32 s%d, 0x100000" % sCnt)
        e("s_cbranch_scc1 L_ok")
        for k in range(3):
            e("buffer_load_dwordx4 v[%d:%d], v%d, s[%d:%d], s%d offen sc1" %
              (vRem + 4 * k, vRem + 4 * k + 3, vVoff, rW, rW + 3, sRemOff + k))
        e("s_branch L_chk")
        self.label("L_ok")
        stamp()
        recs = [X] + [vRem + 4 * k for k in range(3)]
        for h in range(2):
            e("v_max3_f32 v%d, v%d, v%d, v%d" % (Mx + h, recs[0] + 2 + h, recs[1] + 2 + h, recs[2] + 2 + h))
        for h in range(2):
            e("v_max_f32 v%d, v%d, v%d" % (Mx + h, Mx + h, recs[3] + 2 + h))
        for k in range(4):
            for h in range(2):
                e("v_sub_f32 v%d, v%d, v%d" % (recs[k] + 2 + h, recs[k] + 2 + h, Mx + h))
        for k in range(4):
            for h in range(2):
                e("v_exp_f32 v%d, v%d" % (recs[k] + 2 + h, recs[k] + 2 + h))
        e("s_nop 0")
        for h in range(2):
            e("v_add_f32 v%d, v%d, v%d" % (Ls + h, recs[0] + 2 + h, recs[1] + 2 + h))
            e("v_mul_f32 v%d, v%d, v%d" % (Mx + h, recs[0] + 2 + h, recs[0] + h))
        for h in range(2):
            e("v_add_f32 v%d, v%d, v%d" % (Ls + h, Ls + h, recs[2] + 2 + h))
            e("v_fmac_f32 v%d, v%d, v%d" % (Mx + h, recs[1] + 2 + h, recs[1] + h))
        for h in range(2):
            e("v_add_f32 v%d, v%d, v%d" % (Ls + h, Ls + h, recs[3] + 2 + h))
            e("v_fmac_f32 v%d, v%d, v%d" % (Mx + h, recs[2] + 2 + h, recs[2] + h))
        for h in range(2):
            e("v_rcp_f32 v%d, v%d" % (Ls + h, Ls + h))
            e("v_fmac_f32 v%d, v%d, v%d" % (Mx + h, recs[3] + 2 + h, recs[3] + h))
        for h in range(2):
            e("v_mul_f32 v%d, v%d, v%d" % (Mx + h, Mx + h, Ls + h))
        for h in range(2):
            e("v_cvt_pk_bf16_f32 v%d, v%d, v%d" % (Mx + h, Mx + h, Mx + h))
        for h in range(2):
            e("buffer_store_short v%d, v%d, s[%d:%d], s%d offen offset:%d" % (Mx + h, vW0, rO, rO + 3, sT2, h * 256))
        if 'stamp' in self.abl:
            e("s_waitcnt vmcnt(0)")
            stamp()
            e("s_mov_b32 s%d, s%d" % (60 + 2 * 7, sCnt))
            self.nst = 8
            stamp_store()
        self.label("L_end")
        e("s_endpgm")

    def text(self):
        self.build()
        hdr = open("standalone__gqa_softmax__sampling.s.ref").read().split("; @launch")[0]
        out = hdr
        out += "; @launch grid=(256,1,1) block=(256,1,1) lds=%d\n" % (self.lds_bytes)
        out += '.amdgcn_target "amdgcn-amd-amdhsa--gfx950"\n.text\n'
        k = self.name + "_kernel"
        out += ".globl %s\n.p2align 8\n.type %s,@function\n%s:\n" % (k, k, k)
        out += "\n".join(self.lines) + "\n"
        acc = (self.nvgpr + 3) // 4 * 4
        out += """.section .rodata,"a"
.p2align 6
.amdhsa_kernel %s
  .amdhsa_next_free_vgpr %d
  .amdhsa_next_free_sgpr 80
  .amdhsa_accum_offset %d
  .amdhsa_group_segment_fixed_size 0
  .amdhsa_kernarg_size 48
  .amdhsa_user_sgpr_count 2
  .amdhsa_user_sgpr_kernarg_segment_ptr 1
  .amdhsa_system_sgpr_workgroup_id_x 1
.end_amdhsa_kernel
""" % (k, self.nvgpr, acc)
        return out

if __name__ == "__main__":
    ap = argparse.ArgumentParser()
    ap.add_argument("--w1", type=int, default=5)
    ap.add_argument("--w2", type=int, default=8)
    ap.add_argument("--w0", type=int, default=None)
    ap.add_argument("--frac", type=float, default=0.7)
    ap.add_argument("--ns", type=int, default=24)
    ap.add_argument("--abl", default="")
    ap.add_argument("--tick", type=float, default=0.96)
    ap.add_argument("--role", type=float, default=0.99)
    ap.add_argument("--pg", type=int, default=1)
    ap.add_argument("--pf", type=int, default=0)
    ap.add_argument("-o", default="standalone__gqa_softmax__sampling.s")
    a = ap.parse_args()
    g = Gen(W1=a.w1, W2=a.w2, frac=a.frac, NS=a.ns, abl=a.abl, tick=a.tick, role=a.role, W0=a.w0, per_gap=a.pg, pf=a.pf)
    open(a.o, "w").write(g.text())
    print("vgprs", g.nvgpr, "lds", g.lds_bytes, "lines", len(g.lines))
```

```python
import struct, sys, math, argparse

def f32hex(x):
    return "0x%08x" % struct.unpack("<I", struct.pack("<f", x))[0]

class Gen:
    def __init__(self, W1=5, W2=8, frac=0.7, NS=24, ld=" nt", abl="", tick=0.86, role=0.93, W0=None, per_gap=1, pf=0, mix=0, ost=' sc1', ldspad=0,
                 name="standalone__gqa_softmax__sampling"):
        self.W1, self.W2, self.frac, self.NS = W1, W2, frac, NS
        self.W0 = W0
        self.ld, self.abl, self.name = ld, abl, name
        self.tick, self.role = tick, role
        self.per_gap = per_gap
        self.pf = pf
        self.mix = mix
        self.ost = ost
        self.ldspad = ldspad
        self.lines = []
        self.vm = []

    def e(self, s): self.lines.append("    " + s)
    def label(self, s): self.lines.append(s + ":")
    def c(self, s): self.lines.append("    ; " + s)
    def vmem(self, text, tag):
        self.e(text); self.vm.append(tag)
    def outstanding_after(self, tag):
        return len(self.vm) - 1 - self.vm.index(tag)
    def wait_vm(self, tag):
        n = self.outstanding_after(tag)
        assert n <= 63
        if self.known >= self.vm.index(tag):
            return
        self.e("s_waitcnt vmcnt(%d)" % n)
        self.known = self.vm.index(tag)
    def wait_cnt(self, n):
        idx = len(self.vm) - 1 - n
        if idx >= 0 and self.known < idx:
            self.e("s_waitcnt vmcnt(%d)" % n)
            self.known = idx
    def landed(self, tag):
        return tag in self.vm and self.vm.index(tag) <= self.known

    def build(self):
        NW = 4
        KPW = 512
        NL = KPW // 4
        NQ = KPW // 16
        NU = KPW // 32
        NS = self.NS
        self.known = -1
        e = self.e
        vKoff, vVoff, vLane = 1, 2, 3
        vQ = 4
        vACC = 8
        vACCL = 40
        vA = 44
        vF = 48
        vM, vW0, vW1, vT = 56, 57, 58, 59
        vNM = 60
        vP0, vP1 = 61, 62
        vZ = 64
        vRem = 68
        vRemO = 80
        vOa, vMa = 86, 87
        vS = 88
        vWIN = 120
        nvgpr = vWIN + 4 * NS
        assert nvgpr <= 256
        self.nvgpr = nvgpr
        slot = lambda x: vWIN + 4 * (x % NS)
        rK, rV, rQ, rW, rO = 16, 20, 24, 28, 32
        sOffK, sOffV = 36, 37
        sC, sLO, sHI = 38, 39, 40
        sT0, sT1, sT2 = 41, 42, 43
        sWave, sTick, sRole = 44, 45, 46
        sRemOff = 47
        sUse = 50
        sOwn = 53
        sCnt = 54
        sD = 12
        LDS_ROLE = 0
        LDS_CNT = 4
        LDS_M = 64
        LDS_O = 128
        OSTR = 2064
        self.lds_bytes = max(LDS_O + NW * OSTR, self.ldspad)
        cval = math.log2(math.e) / math.sqrt(128.0)
        WSZ = 0x100000 if 'stamp' not in self.abl else 0x200000
        OOB = 0x7000000

        self.nst = 0
        def stamp():
            if 'stamp' in self.abl:
                e("s_memrealtime s[%d:%d]" % (60 + 2 * self.nst, 61 + 2 * self.nst))
                self.nst += 1
        def stamp_store():
            if 'stamp' in self.abl:
                e("s_waitcnt lgkmcnt(0)")
                e("s_mov_b64 exec, 1")
                for i in range(8):
                    e("v_mov_b32 v%d, s%d" % (16 + i, 60 + 2 * i if i < self.nst else 60))
                e("s_lshl_b32 s%d, s2, 7" % sT0)
                e("s_lshl_b32 s%d, s%d, 5" % (sT1, sWave))
                e("s_add_u32 s%d, s%d, s%d" % (sT0, sT0, sT1))
                e("s_add_u32 s%d, s%d, 0x100000" % (sT0, sT0))
                e("v_mov_b32 v24, 0")
                e("buffer_store_dwordx4 v[16:19], v24, s[%d:%d], s%d offen" % (rW, rW + 3, sT0))
                e("buffer_store_dwordx4 v[20:23], v24, s[%d:%d], s%d offen offset:16" % (rW, rW + 3, sT0))
                e("s_mov_b64 exec, -1")

        stamp()
        e("s_load_dwordx4 s[4:7], s[0:1], 0")
        e("s_load_dwordx4 s[8:11], s[0:1], 16")
        e("s_load_dwordx4 s[12:15], s[0:1], 32")
        e("s_cmp_ge_u32 s2, 256")
        e("s_cbranch_scc1 L_end")
        e("v_and_b32 v%d, 63, v0" % vLane)
        e("v_lshrrev_b32 v%d, 6, v0" % vT)
        e("v_and_b32 v%d, 3, v0" % vW1)
        e("v_bfe_u32 v%d, v0, 2, 2" % vW0)
        e("v_bfe_u32 v%d, v0, 4, 2" % vNM)
        e("v_lshlrev_b32 v%d, 6, v%d" % (vNM, vNM))
        e("v_readfirstlane_b32 s%d, v%d" % (sWave, vT))
        e("v_lshl_add_u32 v%d, v%d, 4, v%d" % (vKoff, vW1, vNM))
        e("v_lshl_add_u32 v%d, v%d, 8, v%d" % (vKoff, vW0, vKoff))
        e("v_lshl_add_u32 v%d, v%d, 8, v%d" % (vM, vW1, vNM))
        e("v_lshl_add_u32 v%d, v%d, 4, v%d" % (vM, vW0, vM))
        e("v_lshlrev_b32 v%d, 4, v%d" % (vVoff, vLane))
        e("s_lshl_b32 s%d, s2, 19" % sOffK)
        e("s_lshl_b32 s%d, s%d, 12" % (sT0, sWave))
        e("s_add_u32 s%d, s%d, s%d" % (sOffK, sOffK, sT0))
        e("s_mov_b32 s%d, s%d" % (sOffV, sOffK))
        e("s_lshr_b32 s%d, s2, 2" % sT1)
        e("s_lshl_b32 s%d, s%d, 10" % (sT2, sT1))
        e("s_mov_b32 s%d, 0x8000000" % (rK + 2))
        e("s_mov_b32 s%d, 0x20000" % (rK + 3))
        e("s_mov_b32 s%d, 0x10000" % (rQ + 2))
        e("s_mov_b32 s%d, 0x20000" % (rQ + 3))
        e("s_waitcnt lgkmcnt(0)")
        e("s_mov_b32 s%d, s6" % rK)
        e("s_and_b32 s%d, s7, 0xffff" % (rK + 1))
        e("s_mov_b32 s%d, s4" % rQ)
        e("s_and_b32 s%d, s5, 0xffff" % (rQ + 1))
        gstride = 4096 * NW
        st = {"k": 0, "v": 0}
        def issue(x):
            r = slot(x)
            if x < NL:
                grp, j = divmod(x, 4)
                if grp != st["k"]:
                    e("s_add_u32 s%d, s%d, %d" % (sOffK, sOffK, gstride)); st["k"] = grp
                self.vmem("buffer_load_dwordx4 v[%d:%d], v%d, s[%d:%d], s%d offen offset:%d%s" %
                          (r, r + 3, vKoff, rK, rK + 3, sOffK, j * 1024, self.ld), ("ld", x))
            else:
                grp, j = divmod(x - NL, 4)
                if grp != st["v"]:
                    e("s_add_u32 s%d, s%d, %d" % (sOffV, sOffV, gstride)); st["v"] = grp
                self.vmem("buffer_load_dwordx4 v[%d:%d], v%d, s[%d:%d], s%d offen offset:%d%s" %
                          (r, r + 3, vVoff, rV, rV + 3, sOffV, j * 1024, self.ld), ("ld", x))
        def window(x):
            if self.W0 is not None and x < self.W0:
                return self.W0
            if x < self.frac * 2 * NL:
                return self.W1 + (1 if (self.mix and x > 8 and x % self.mix == 0) else 0)
            return self.W2

        bundles = []
        D = vACC
        def mkA(q):
            def f():
                for j in range(4):
                    r = slot(4 * q + j)
                    e("v_mfma_f32_16x16x32_bf16 v[%d:%d], v[%d:%d], v[%d:%d], 0" %
                      (D + 4 * j, D + 4 * j + 3, r, r + 3, vQ, vQ + 3))
                e("s_nop 4")
            return f
        def mkB(q):
            def f():
                d = lambda j, r: D + 4 * j + r
                rot = "row_ror:12"
                e("s_nop 2")
                for (w, j0) in ((vW0, 0), (vW1, 2)):
                    e("v_add_f32_dpp v%d, v%d, v%d %s row_mask:0xf bank_mask:0x1" % (w, d(j0, 1), d(j0, 0), rot))
                    e("v_add_f32_dpp v%d, v%d, v%d %s row_mask:0xf bank_mask:0x4" % (w, d(j0, 3), d(j0, 2), rot))
                    e("v_add_f32_dpp v%d, v%d, v%d %s row_mask:0xf bank_mask:0x2" % (w, d(j0 + 1, 2), d(j0 + 1, 1), rot))
                    e("v_add_f32_dpp v%d, v%d, v%d %s row_mask:0xf bank_mask:0x8" % (w, d(j0 + 1, 0), d(j0 + 1, 3), rot))
                e("v_add_f32_dpp v%d, v%d, v%d row_ror:8 row_mask:0xf bank_mask:0x3" % (vS + q, vW0, vW0))
                e("s_nop 0")
                e("v_add_f32_dpp v%d, v%d, v%d row_ror:8 row_mask:0xf bank_mask:0xc" % (vS + q, vW1, vW1))
                if q == 0:
                    e("v_mov_b32 v%d, v%d" % (vM, vS))
                else:
                    e("v_max_f32 v%d, v%d, v%d" % (vM, vM, vS + q))
            return f
        def xlane_max(v, t):
            e("s_nop 1")
            e("v_max_f32_dpp v%d, v%d, v%d row_ror:4 row_mask:0xf bank_mask:0xf" % (v, v, v))
            e("s_nop 1")
            e("v_max_f32_dpp v%d, v%d, v%d row_ror:8 row_mask:0xf bank_mask:0xf" % (v, v, v))
            e("v_mov_b32 v%d, v%d" % (t, v))
            e("s_nop 1")
            e("v_permlane16_swap_b32 v%d, v%d" % (v, t))
            e("v_max_f32 v%d, v%d, v%d" % (v, v, t))
            e("v_mov_b32 v%d, v%d" % (t, v))
            e("s_nop 1")
            e("v_permlane32_swap_b32 v%d, v%d" % (v, t))
            e("v_max_f32 v%d, v%d, v%d" % (v, v, t))
        def trans():
            assert self.landed(("clr", 3))
            stamp()
            xlane_max(vM, vW0)
            e("v_and_b32 v%d, 15, v%d" % (vW1, vLane))
            e("v_lshlrev_b32 v%d, 2, v%d" % (vW1, vW1))
            e("s_lshl_b32 s%d, s%d, 4" % (sT0, sWave))
            e("v_add_u32 v%d, s%d, v%d" % (vW0, sT0, vW1))
            e("v_mov_b32 v%d, 1" % vT)
            e("s_mov_b64 exec, 0xf")
            e("ds_write_b32 v%d, v%d offset:%d" % (vW0, vM, LDS_M))
            e("s_mov_b64 exec, 1")
            e("ds_add_u32 v%d, v%d offset:%d" % (vZ, vT, LDS_CNT))
            e("s_mov_b64 exec, -1")
            for r in range(4):
                e("v_mov_b32 v%d, 0x3f803f80" % (vQ + r))
        def trans2():
            self.label("L_wmax")
            e("ds_read_b32 v%d, v%d offset:%d" % (vT, vZ, LDS_CNT))
            e("ds_read_b32 v%d, v%d offset:%d" % (vM, vW1, LDS_M))
            e("s_waitcnt lgkmcnt(0)")
            e("v_readfirstlane_b32 s%d, v%d" % (sT0, vT))
            e("s_cmp_lg_u32 s%d, 4" % sT0)
            e("s_cbranch_scc1 L_wmax")
            e("v_max_f32_dpp v%d, v%d, v%d row_ror:4 row_mask:0xf bank_mask:0xf" % (vM, vM, vM))
            e("s_nop 1")
            e("v_max_f32_dpp v%d, v%d, v%d row_ror:8 row_mask:0xf bank_mask:0xf" % (vM, vM, vM))
            e("v_mul_f32 v%d, s%d, v%d" % (vNM, sC, vM))
        def mkP(u):
            def f():
                e("v_fma_f32 v%d, v%d, s%d, -v%d" % (vP0, vS + 2 * u, sC, vNM))
                e("v_fma_f32 v%d, v%d, s%d, -v%d" % (vP1, vS + 2 * u + 1, sC, vNM))
                e("v_exp_f32 v%d, v%d" % (vP0, vP0))
                e("v_exp_f32 v%d, v%d" % (vP1, vP1))
                e("s_nop 0")
                e("v_cvt_pk_bf16_f32 v%d, v%d, v%d" % (vA, vP0, vP1))
                e("s_nop 1")
                e("v_mov_b32_dpp v%d, v%d row_ror:12 row_mask:0xf bank_mask:0xf" % (vA + 1, vA))
                e("v_mov_b32_dpp v%d, v%d row_ror:8 row_mask:0xf bank_mask:0xf" % (vA + 2, vA))
                e("v_mov_b32_dpp v%d, v%d row_ror:4 row_mask:0xf bank_mask:0xf" % (vA + 3, vA))
                e("s_nop 1")
                cc = "0" if u == 0 else "v[%d:%d]" % (vACCL, vACCL + 3)
                e("v_mfma_f32_16x16x32_bf16 v[%d:%d], v[%d:%d], v[%d:%d], %s" % (vACCL, vACCL + 3, vA, vA + 3, vQ, vQ + 3, cc))
            return f
        def mkC(u, half):
            base = NL + 8 * u
            def perms(i):
                F = vF + 4 * (i & 1)
                sel = sHI if (i & 1) else sLO
                for p in range(4):
                    e("v_perm_b32 v%d, v%d, v%d, s%d" % (F + p, slot(base + p + 4) + (i >> 1), slot(base + p) + (i >> 1), sel))
            def mf(i):
                F = vF + 4 * (i & 1)
                a = vACC + 4 * i
                cc = "0" if u == 0 else "v[%d:%d]" % (a, a + 3)
                e("v_mfma_f32_16x16x32_bf16 v[%d:%d], v[%d:%d], v[%d:%d], %s" % (a, a + 3, vA, vA + 3, F, F + 3, cc))
            def f():
                i0 = 4 * half
                perms(i0); perms(i0 + 1); mf(i0); perms(i0 + 2); mf(i0 + 1); perms(i0 + 3); mf(i0 + 2)
                e("s_nop 0")
                mf(i0 + 3)
            return f
        for q in range(NQ):
            bundles.append(("A%d" % q, ("ld", 4 * q + 3), list(range(4 * q, 4 * q + 4)), mkA(q)))
            bundles.append(("B%d" % q, None, [], mkB(q)))
        bundles.append(("T", None, [], trans))
        bundles.append(("T2", ("ld", NL + 12), [], trans2))
        for u in range(NU):
            bundles.append(("P%d" % u, None, [], mkP(u)))
            bundles.append(("C%d_0" % u, ("ld", NL + 8 * u + 7), [], mkC(u, 0)))
            bundles.append(("C%d_1" % u, None, list(range(NL + 8 * u, NL + 8 * u + 8)), mkC(u, 1)))

        def ev_setup():
            e("s_mov_b32 s%d, s8" % rV)
            e("s_and_b32 s%d, s9, 0xffff" % (rV + 1))
            e("s_mov_b32 s%d, 0x8000000" % (rV + 2))
            e("s_mov_b32 s%d, 0x20000" % (rV + 3))
            e("s_mov_b32 s%d, %s" % (sC, f32hex(cval)))
            e("s_mov_b32 s%d, 0x05040100" % sLO)
            e("s_mov_b32 s%d, 0x07060302" % sHI)
            e("s_mov_b32 s%d, s14" % rW)
            e("s_and_b32 s%d, s15, 0xffff" % (rW + 1))
            e("s_mov_b32 s%d, 0x%x" % (rW + 2, WSZ))
            e("s_mov_b32 s%d, 0x20000" % (rW + 3))
            e("s_mov_b32 s%d, s10" % rO)
            e("s_and_b32 s%d, s11, 0xffff" % (rO + 1))
            e("s_mov_b32 s%d, 0x10000" % (rO + 2))
            e("s_mov_b32 s%d, 0x20000" % (rO + 3))
            e("s_lshl_b32 s%d, s%d, 2" % (sT1, sT1))
            e("s_add_u32 s12, s12, s%d" % sT1)
            e("s_addc_u32 s13, s13, 0")
            e("s_lshl_b32 s%d, s%d, 10" % (sT0, sWave))
            e("s_lshl_b32 s%d, s2, 12" % sOwn)
            e("s_add_u32 s%d, s%d, s%d" % (sOwn, sOwn, sT0))
            for k in range(1, 4):
                e("s_add_u32 s%d, s2, %d" % (sT1, k))
                e("s_and_b32 s%d, s%d, 3" % (sT1, sT1))
                e("s_and_b32 s%d, s2, 0xfc" % sCnt)
                e("s_or_b32 s%d, s%d, s%d" % (sT1, sT1, sCnt))
                e("s_lshl_b32 s%d, s%d, 12" % (sT1, sT1))
                e("s_add_u32 s%d, s%d, s%d" % (sRemOff + k - 1, sT1, sT0))
            e("v_and_b32 v%d, 3, v0" % vOa)
            e("v_lshlrev_b32 v%d, 9, v%d" % (vOa, vOa))
            e("v_bfe_u32 v%d, v0, 2, 4" % vMa)
            e("v_lshl_add_u32 v%d, v%d, 4, v%d" % (vOa, vMa, vOa))
            e("s_lshl_b32 s%d, s%d, 2" % (sT0, sWave))
            e("v_add_u32 v%d, s%d, v%d" % (vOa, sT0, vOa))
            e("v_mov_b32 v%d, s%d" % (vMa, sT0))
            e("s_lshl_b32 s%d, s%d, 8" % (sT0, sWave))
            e("s_add_u32 s%d, s%d, s%d" % (sT2, sT2, sT0))
            for r in range(4):
                e("v_mov_b32 v%d, 0" % (vZ + r))
            if 'noclr' in self.abl:
                e("s_mov_b32 s%d, 0x%x" % (sT0, OOB))
            else:
                e("s_mov_b32 s%d, s%d" % (sT0, sOwn))
            self.vmem("buffer_store_dwordx4 v[%d:%d], v%d, s[%d:%d], s%d offen sc1" %
                      (vZ, vZ + 3, vVoff, rW, rW + 3, sT0), ("clr", 3))
            e("ds_write_b64 v%d, v[%d:%d] offset:%d" % (vZ, vZ, vZ + 1, LDS_ROLE))
            e("s_waitcnt lgkmcnt(0)")
            e("s_barrier")
        def ev_ticket():
            if 'notick' in self.abl:
                e('s_mov_b32 s%d, 0' % sTick)
                return
            assert self.landed(("clr", 3))
            e("s_cmp_lg_u32 s%d, 0" % sWave)
            e("s_cbranch_scc1 L_notick")
            e("s_mov_b32 s%d, 1" % sTick)
            e("s_atomic_add s%d, s[12:13], 0 glc" % sTick)
            self.label("L_notick")
        def ev_role():
            e("s_cmp_lg_u32 s%d, 0" % sWave)
            e("s_cbranch_scc1 L_norole")
            e("s_waitcnt lgkmcnt(0)")
            e("s_add_u32 s%d, s%d, 1" % (sTick, sTick))
            e("v_mov_b32 v%d, s%d" % (vT, sTick))
            e("ds_write_b32 v%d, v%d offset:%d" % (vZ, vT, LDS_ROLE))
            self.label("L_norole")
        def rem_load(k, so, track=True):
            t2 = "buffer_load_dwordx4 v[%d:%d], v%d, s[%d:%d], s%d offen sc1" % (vRem + 4 * k, vRem + 4 * k + 3, vVoff, rW, rW + 3, so)
            if track:
                self.vmem(t2, ("rem", k, len(self.vm)))
            else:
                e(t2)
        def rem_loads():
            for k in range(3):
                rem_load(k, sUse + k)
        def ev_prefetch_a():
            e("ds_read_b32 v%d, v%d offset:%d" % (vT, vZ, LDS_ROLE))
        def ev_prefetch_b():
            e("s_waitcnt lgkmcnt(0)")
            e("v_readfirstlane_b32 s%d, v%d" % (sRole, vT))
            e("s_cmp_eq_u32 s%d, 4" % sRole)
            for k in range(3):
                e("s_cselect_b32 s%d, s%d, 0x%x" % (sUse + k, sRemOff + k, OOB))
            rem_loads()
        TOT = 2 * NL
        events = {int(self.tick * TOT): ev_ticket, int(self.role * TOT): ev_role}

        self.vmem("buffer_load_dwordx4 v[%d:%d], v%d, s[%d:%d], s%d offen" % (vQ, vQ + 3, vM, rQ, rQ + 3, sT2), "q")
        freed = set()
        bi = 0
        def emit_bundle(force):
            nonlocal bi
            name, need, frees, fn = bundles[bi]
            if need is not None and not self.landed(need):
                if not force:
                    return False
                self.wait_vm(need)
            self.c(name)
            if not ('nocomp' in self.abl and name[0] != 'T'):
                fn()
            freed.update(frees)
            bi += 1
            return True
        first = window(0)
        for x in range(TOT):
            while x >= NS and (x - NS) not in freed:
                emit_bundle(True)
            w = window(x)
            if x - w >= 0:
                self.wait_vm(("ld", x - w))
                if x - w == 3:
                    stamp()
            issue(x)
            if x == first - 1:
                ev_setup()
            if x in events:
                events[x]()
            n = 0
            while bi < len(bundles) and n < self.per_gap and emit_bundle(False):
                n += 1
        while bi < len(bundles):
            if bi == len(bundles) - 2:
                self.wait_vm(bundles[bi][1])
                ev_prefetch_a()
            emit_bundle(True)
            if bi == len(bundles) - self.pf:
                ev_prefetch_b()
        stamp()
        if 'noepi' in self.abl:
            e('s_waitcnt vmcnt(0)')
            e('s_endpgm')
        e("s_mul_i32 s%d, s%d, %d" % (sT0, sWave, OSTR))
        e("v_add_u32 v%d, s%d, v%d" % (vW0, sT0, vVoff))
        X = 44
        e("v_readlane_b32 s%d, v%d, s%d" % (sT1, vNM, sWave))
        e("s_mov_b64 exec, 1")
        e("ds_write_b128 v%d, v[%d:%d] offset:%d" % (vW0, vACCL, vACCL + 3, LDS_O + 2048))
        e("s_mov_b64 exec, 0xffff")
        for i in range(8):
            if i == 4:
                e("s_nop 1")
            e("ds_write_b128 v%d, v[%d:%d] offset:%d" % (vW0, vACC + 4 * i, vACC + 4 * i + 3, LDS_O + i * 256))
        e("s_mov_b64 exec, -1")
        e("v_mov_b32 v%d, s%d" % (X + 2, sT1))
        e("v_lshlrev_b32 v%d, 2, v%d" % (vW1, vLane))
        e("s_waitcnt lgkmcnt(0)")
        e("s_barrier")
        stamp()
        R = vS
        ll = lambda w: R + w
        oo = lambda w: R + 8 + 2 * w
        for w in range(4):
            for h in range(2):
                e("ds_read_b32 v%d, v%d offset:%d" % (oo(w) + h, vOa, LDS_O + w * OSTR + 256 * h))
        for w in range(4):
            e("ds_read_b32 v%d, v%d offset:%d" % (ll(w), vMa, LDS_O + w * OSTR + 2048))
        e("ds_read_b32 v%d, v%d offset:%d" % (vT, vZ, LDS_ROLE))
        e("s_waitcnt lgkmcnt(5)")
        for h in range(2):
            e("v_add_f32 v%d, v%d, v%d" % (X + h, oo(0) + h, oo(1) + h))
            e("v_add_f32 v%d, v%d, v%d" % (oo(2) + h, oo(2) + h, oo(3) + h))
        for h in range(2):
            e("v_add_f32 v%d, v%d, v%d" % (X + h, X + h, oo(2) + h))
        e("s_waitcnt lgkmcnt(0)")
        e("v_readfirstlane_b32 s%d, v%d" % (sRole, vT))
        e("v_add_f32 v%d, v%d, v%d" % (X + 3, ll(0), ll(1)))
        e("v_add_f32 v%d, v%d, v%d" % (ll(2), ll(2), ll(3)))
        e("v_add_f32 v%d, v%d, v%d" % (X + 3, X + 3, ll(2)))
        if 'nopub' in self.abl:
            e('s_endpgm')
        e("s_cmp_eq_u32 s%d, 4" % sRole)
        e("s_cbranch_scc1 L_comb")
        for r in range(4):
            e("v_or_b32 v%d, 1, v%d" % (X + r, X + r))
        e("buffer_store_dwordx4 v[%d:%d], v%d, s[%d:%d], s%d offen sc1" % (X, X + 3, vVoff, rW, rW + 3, sOwn))
        if 'stamp' in self.abl:
            sv = self.nst
            stamp(); stamp()
            stamp_store()
            self.nst = sv
        e("s_endpgm")
        self.label("L_comb")
        e("s_mov_b32 s%d, 0" % sCnt)
        T3 = 16
        self.label("L_chk")
        e("s_waitcnt vmcnt(0)")
        for k in range(3):
            e("v_and_b32 v%d, v%d, v%d" % (T3 + k, vRem + 4 * k, vRem + 4 * k + 1))
        for r in range(2, 4):
            for k in range(3):
                e("v_and_b32 v%d, v%d, v%d" % (T3 + k, T3 + k, vRem + 4 * k + r))
        e("v_and_b32 v%d, v%d, v%d" % (vT, T3, T3 + 1))
        e("v_and_b32 v%d, v%d, v%d" % (vT, vT, T3 + 2))
        e("v_and_b32 v%d, 1, v%d" % (vT, vT))
        e("v_cmp_ne_u32 vcc, 1, v%d" % vT)
        e("s_cbranch_vccz L_ok")
        if 'nopoll' in self.abl:
            e("s_branch L_ok")
        e("s_add_u32 s%d, s%d, 1" % (sCnt, sCnt))
        e("s_cmp_gt_u32 s%d, 0x100000" % sCnt)
        e("s_cbranch_scc1 L_ok")
        for k in range(3):
            e("v_and_b32 v%d, 1, v%d" % (vT, T3 + k))
            e("v_cmp_ne_u32 vcc, 1, v%d" % vT)
            e("s_cbranch_vccz L_skip%d" % k)
            rem_load(k, sRemOff + k, track=False)
            self.label("L_skip%d" % k)
        e("s_branch L_chk")
        self.label("L_ok")
        stamp()
        Rs = [X] + [vRem + 4 * k for k in range(3)]
        Mx, Ls, Oa = 16, 18, 20
        e("v_max3_f32 v%d, v%d, v%d, v%d" % (Mx, Rs[0] + 2, Rs[1] + 2, Rs[2] + 2))
        e("v_max_f32 v%d, v%d, v%d" % (Mx, Mx, Rs[3] + 2))
        for k in range(4):
            e("v_sub_f32 v%d, v%d, v%d" % (Rs[k] + 2, Rs[k] + 2, Mx))
        for k in range(4):
            e("v_exp_f32 v%d, v%d" % (Rs[k] + 2, Rs[k] + 2))
        e("v_mul_f32 v%d, v%d, v%d" % (Ls, Rs[0] + 2, Rs[0] + 3))
        for k in range(1, 4):
            e("v_fmac_f32 v%d, v%d, v%d" % (Ls, Rs[k] + 2, Rs[k] + 3))
        e("v_rcp_f32 v%d, v%d" % (Ls, Ls))
        for h in range(2):
            e("v_mul_f32 v%d, v%d, v%d" % (Oa + h, Rs[0] + 2, Rs[0] + h))
        for k in range(1, 4):
            for h in range(2):
                e("v_fmac_f32 v%d, v%d, v%d" % (Oa + h, Rs[k] + 2, Rs[k] + h))
        for h in range(2):
            e("v_mul_f32 v%d, v%d, v%d" % (Oa + h, Oa + h, Ls))
        e("v_cvt_pk_bf16_f32 v%d, v%d, v%d" % (Oa, Oa, Oa + 1))
        if 'noout' not in self.abl:
            e("buffer_store_dword v%d, v%d, s[%d:%d], s%d offen%s" % (Oa, vW1, rO, rO + 3, sT2, self.ost))
        if 'stamp' in self.abl:
            e("s_waitcnt vmcnt(0)")
            stamp()
            e("s_mov_b32 s%d, s%d" % (60 + 2 * 7, sCnt))
            self.nst = 8
            stamp_store()
        self.label("L_end")
        e("s_endpgm")

    def text(self):
        self.build()
        hdr = open("standalone__gqa_softmax__sampling.s.ref").read().split("; @launch")[0]
        out = hdr
        out += "; @launch grid=(256,1,1) block=(256,1,1) lds=%d\n" % (self.lds_bytes)
        out += '.amdgcn_target "amdgcn-amd-amdhsa--gfx950"\n.text\n'
        k = self.name + "_kernel"
        out += ".globl %s\n.p2align 8\n.type %s,@function\n%s:\n" % (k, k, k)
        out += "\n".join(self.lines) + "\n"
        acc = (self.nvgpr + 3) // 4 * 4
        out += """.section .rodata,"a"
.p2align 6
.amdhsa_kernel %s
  .amdhsa_next_free_vgpr %d
  .amdhsa_next_free_sgpr 80
  .amdhsa_accum_offset %d
  .amdhsa_group_segment_fixed_size 0
  .amdhsa_kernarg_size 48
  .amdhsa_user_sgpr_count 2
  .amdhsa_user_sgpr_kernarg_segment_ptr 1
  .amdhsa_system_sgpr_workgroup_id_x 1
.end_amdhsa_kernel
""" % (k, self.nvgpr, acc)
        return out

if __name__ == "__main__":
    ap = argparse.ArgumentParser()
    ap.add_argument("--w1", type=int, default=5)
    ap.add_argument("--w2", type=int, default=8)
    ap.add_argument("--w0", type=int, default=None)
    ap.add_argument("--frac", type=float, default=0.7)
    ap.add_argument("--ns", type=int, default=24)
    ap.add_argument("--abl", default="")
    ap.add_argument("--tick", type=float, default=0.96)
    ap.add_argument("--role", type=float, default=0.99)
    ap.add_argument("--pg", type=int, default=1)
    ap.add_argument("--pf", type=int, default=0)
    ap.add_argument("--mix", type=int, default=0)
    ap.add_argument("--ost", default=" sc1")
    ap.add_argument("--ldspad", type=int, default=0)
    ap.add_argument("-o", default="standalone__gqa_softmax__sampling.s")
    a = ap.parse_args()
    g = Gen(W1=a.w1, W2=a.w2, frac=a.frac, NS=a.ns, abl=a.abl, tick=a.tick, role=a.role, W0=a.w0, per_gap=a.pg, pf=a.pf, mix=a.mix, ost=a.ost, ldspad=a.ldspad)
    open(a.o, "w").write(g.text())
    print("vgprs", g.nvgpr, "lds", g.lds_bytes, "lines", len(g.lines))
```

```python
import struct, sys, math, argparse

def f32hex(x):
    return "0x%08x" % struct.unpack("<I", struct.pack("<f", x))[0]

class Gen:
    def __init__(self, W1=5, W2=8, frac=0.7, NS=24, ld=" nt", abl="", tick=0.86, role=0.93, W0=None, per_gap=1, pf=0, mix=0, ost=' sc1', ldspad=0,
                 name="standalone__gqa_softmax__sampling"):
        self.W1, self.W2, self.frac, self.NS = W1, W2, frac, NS
        self.W0 = W0
        self.ld, self.abl, self.name = ld, abl, name
        self.tick, self.role = tick, role
        self.per_gap = per_gap
        self.pf = pf
        self.mix = mix
        self.ost = ost
        self.ldspad = ldspad
        self.lines = []
        self.vm = []

    def e(self, s): self.lines.append("    " + s)
    def label(self, s): self.lines.append(s + ":")
    def c(self, s): self.lines.append("    ; " + s)
    def vmem(self, text, tag):
        self.e(text); self.vm.append(tag)
    def outstanding_after(self, tag):
        return len(self.vm) - 1 - self.vm.index(tag)
    def wait_vm(self, tag):
        n = self.outstanding_after(tag)
        assert n <= 63
        if self.known >= self.vm.index(tag):
            return
        self.e("s_waitcnt vmcnt(%d)" % n)
        self.known = self.vm.index(tag)
    def wait_cnt(self, n):
        idx = len(self.vm) - 1 - n
        if idx >= 0 and self.known < idx:
            self.e("s_waitcnt vmcnt(%d)" % n)
            self.known = idx
    def landed(self, tag):
        return tag in self.vm and self.vm.index(tag) <= self.known

    def build(self):
        NW = 4
        KPW = 512
        NL = KPW // 4
        NQ = KPW // 16
        NU = KPW // 32
        NS = self.NS
        self.known = -1
        e = self.e
        vKoff, vVoff, vLane = 1, 2, 3
        vQ = 4
        vACC = 8
        vACCL = 40
        vA = 44
        vF = 48
        vM, vW0, vW1, vT = 56, 57, 58, 59
        vNM = 60
        vP0, vP1 = 61, 62
        vZ = 64
        vRem = 68
        vRemO = 80
        vOa, vMa = 86, 87
        vS = 88
        vWIN = 120
        nvgpr = vWIN + 4 * NS
        assert nvgpr <= 256
        self.nvgpr = nvgpr
        slot = lambda x: vWIN + 4 * (x % NS)
        rK, rV, rQ, rW, rO = 16, 20, 24, 28, 32
        sOffK, sOffV = 36, 37
        sC, sLO, sHI = 38, 39, 40
        sT0, sT1, sT2 = 41, 42, 43
        sWave, sTick, sRole = 44, 45, 46
        sRemOff = 47
        sUse = 50
        sOwn = 53
        sCnt = 54
        sD = 12
        LDS_ROLE = 0
        LDS_CNT = 4
        LDS_M = 64
        LDS_O = 128
        OSTR = 2064
        self.lds_bytes = max(LDS_O + NW * OSTR, self.ldspad)
        cval = math.log2(math.e) / math.sqrt(128.0)
        WSZ = 0x100000 if 'stamp' not in self.abl else 0x200000
        OOB = 0x7000000

        self.nst = 0
        def stamp():
            if 'stamp' in self.abl:
                e("s_memrealtime s[%d:%d]" % (60 + 2 * self.nst, 61 + 2 * self.nst))
                self.nst += 1
        def stamp_store():
            if 'stamp' in self.abl:
                e("s_waitcnt lgkmcnt(0)")
                e("s_mov_b64 exec, 1")
                for i in range(8):
                    e("v_mov_b32 v%d, s%d" % (16 + i, 60 + 2 * i if i < self.nst else 60))
                e("s_lshl_b32 s%d, s2, 7" % sT0)
                e("s_lshl_b32 s%d, s%d, 5" % (sT1, sWave))
                e("s_add_u32 s%d, s%d, s%d" % (sT0, sT0, sT1))
                e("s_add_u32 s%d, s%d, 0x100000" % (sT0, sT0))
                e("v_mov_b32 v24, 0")
                e("buffer_store_dwordx4 v[16:19], v24, s[%d:%d], s%d offen" % (rW, rW + 3, sT0))
                e("buffer_store_dwordx4 v[20:23], v24, s[%d:%d], s%d offen offset:16" % (rW, rW + 3, sT0))
                e("s_mov_b64 exec, -1")

        stamp()
        if 'amp' in self.abl:
            e("s_memrealtime s[60:61]")
        e("s_load_dwordx4 s[4:7], s[0:1], 0")
        e("s_load_dwordx4 s[8:11], s[0:1], 16")
        e("s_load_dwordx4 s[12:15], s[0:1], 32")
        e("s_cmp_ge_u32 s2, 256")
        e("s_cbranch_scc1 L_end")
        e("v_and_b32 v%d, 63, v0" % vLane)
        e("v_lshrrev_b32 v%d, 6, v0" % vT)
        e("v_and_b32 v%d, 3, v0" % vW1)
        e("v_bfe_u32 v%d, v0, 2, 2" % vW0)
        e("v_bfe_u32 v%d, v0, 4, 2" % vNM)
        e("v_lshlrev_b32 v%d, 6, v%d" % (vNM, vNM))
        e("v_readfirstlane_b32 s%d, v%d" % (sWave, vT))
        e("v_lshl_add_u32 v%d, v%d, 4, v%d" % (vKoff, vW1, vNM))
        e("v_lshl_add_u32 v%d, v%d, 8, v%d" % (vKoff, vW0, vKoff))
        e("v_lshl_add_u32 v%d, v%d, 8, v%d" % (vM, vW1, vNM))
        e("v_lshl_add_u32 v%d, v%d, 4, v%d" % (vM, vW0, vM))
        e("v_lshlrev_b32 v%d, 4, v%d" % (vVoff, vLane))
        e("s_lshl_b32 s%d, s2, 19" % sOffK)
        e("s_lshl_b32 s%d, s%d, 12" % (sT0, sWave))
        e("s_add_u32 s%d, s%d, s%d" % (sOffK, sOffK, sT0))
        e("s_mov_b32 s%d, s%d" % (sOffV, sOffK))
        e("s_lshr_b32 s%d, s2, 2" % sT1)
        e("s_lshl_b32 s%d, s%d, 10" % (sT2, sT1))
        e("s_mov_b32 s%d, 0x8000000" % (rK + 2))
        e("s_mov_b32 s%d, 0x20000" % (rK + 3))
        e("s_mov_b32 s%d, 0x10000" % (rQ + 2))
        e("s_mov_b32 s%d, 0x20000" % (rQ + 3))
        e("s_waitcnt lgkmcnt(0)")
        e("s_mov_b32 s%d, s6" % rK)
        e("s_and_b32 s%d, s7, 0xffff" % (rK + 1))
        e("s_mov_b32 s%d, s4" % rQ)
        e("s_and_b32 s%d, s5, 0xffff" % (rQ + 1))
        gstride = 4096 * NW
        st = {"k": 0, "v": 0}
        def issue(x):
            r = slot(x)
            if x < NL:
                grp, j = divmod(x, 4)
                if grp != st["k"]:
                    e("s_add_u32 s%d, s%d, %d" % (sOffK, sOffK, gstride)); st["k"] = grp
                self.vmem("buffer_load_dwordx4 v[%d:%d], v%d, s[%d:%d], s%d offen offset:%d%s" %
                          (r, r + 3, vKoff, rK, rK + 3, sOffK, j * 1024, self.ld), ("ld", x))
            else:
                grp, j = divmod(x - NL, 4)
                if grp != st["v"]:
                    e("s_add_u32 s%d, s%d, %d" % (sOffV, sOffV, gstride)); st["v"] = grp
                self.vmem("buffer_load_dwordx4 v[%d:%d], v%d, s[%d:%d], s%d offen offset:%d%s" %
                          (r, r + 3, vVoff, rV, rV + 3, sOffV, j * 1024, self.ld), ("ld", x))
        def window(x):
            if self.W0 is not None and x < self.W0:
                return self.W0
            if x < self.frac * 2 * NL:
                return self.W1 + (1 if (self.mix and x > 8 and x % self.mix == 0) else 0)
            return self.W2

        bundles = []
        D = vACC
        def mkA(q):
            def f():
                for j in range(4):
                    r = slot(4 * q + j)
                    e("v_mfma_f32_16x16x32_bf16 v[%d:%d], v[%d:%d], v[%d:%d], 0" %
                      (D + 4 * j, D + 4 * j + 3, r, r + 3, vQ, vQ + 3))
                e("s_nop 4")
            return f
        def mkB(q):
            def f():
                d = lambda j, r: D + 4 * j + r
                rot = "row_ror:12"
                e("s_nop 2")
                for (w, j0) in ((vW0, 0), (vW1, 2)):
                    e("v_add_f32_dpp v%d, v%d, v%d %s row_mask:0xf bank_mask:0x1" % (w, d(j0, 1), d(j0, 0), rot))
                    e("v_add_f32_dpp v%d, v%d, v%d %s row_mask:0xf bank_mask:0x4" % (w, d(j0, 3), d(j0, 2), rot))
                    e("v_add_f32_dpp v%d, v%d, v%d %s row_mask:0xf bank_mask:0x2" % (w, d(j0 + 1, 2), d(j0 + 1, 1), rot))
                    e("v_add_f32_dpp v%d, v%d, v%d %s row_mask:0xf bank_mask:0x8" % (w, d(j0 + 1, 0), d(j0 + 1, 3), rot))
                e("v_add_f32_dpp v%d, v%d, v%d row_ror:8 row_mask:0xf bank_mask:0x3" % (vS + q, vW0, vW0))
                e("s_nop 0")
                e("v_add_f32_dpp v%d, v%d, v%d row_ror:8 row_mask:0xf bank_mask:0xc" % (vS + q, vW1, vW1))
                if q == 0:
                    e("v_mov_b32 v%d, v%d" % (vM, vS))
                else:
                    e("v_max_f32 v%d, v%d, v%d" % (vM, vM, vS + q))
            return f
        def xlane_max(v, t):
            e("s_nop 1")
            e("v_max_f32_dpp v%d, v%d, v%d row_ror:4 row_mask:0xf bank_mask:0xf" % (v, v, v))
            e("s_nop 1")
            e("v_max_f32_dpp v%d, v%d, v%d row_ror:8 row_mask:0xf bank_mask:0xf" % (v, v, v))
            e("v_mov_b32 v%d, v%d" % (t, v))
            e("s_nop 1")
            e("v_permlane16_swap_b32 v%d, v%d" % (v, t))
            e("v_max_f32 v%d, v%d, v%d" % (v, v, t))
            e("v_mov_b32 v%d, v%d" % (t, v))
            e("s_nop 1")
            e("v_permlane32_swap_b32 v%d, v%d" % (v, t))
            e("v_max_f32 v%d, v%d, v%d" % (v, v, t))
        def trans():
            assert self.landed(("clr", 3))
            stamp()
            xlane_max(vM, vW0)
            e("v_and_b32 v%d, 15, v%d" % (vW1, vLane))
            e("v_lshlrev_b32 v%d, 2, v%d" % (vW1, vW1))
            e("s_lshl_b32 s%d, s%d, 4" % (sT0, sWave))
            e("v_add_u32 v%d, s%d, v%d" % (vW0, sT0, vW1))
            e("v_mov_b32 v%d, 1" % vT)
            e("s_mov_b64 exec, 0xf")
            e("ds_write_b32 v%d, v%d offset:%d" % (vW0, vM, LDS_M))
            e("s_mov_b64 exec, 1")
            e("ds_add_u32 v%d, v%d offset:%d" % (vZ, vT, LDS_CNT))
            e("s_mov_b64 exec, -1")
            for r in range(4):
                e("v_mov_b32 v%d, 0x3f803f80" % (vQ + r))
        def trans2():
            self.label("L_wmax")
            e("ds_read_b32 v%d, v%d offset:%d" % (vT, vZ, LDS_CNT))
            e("ds_read_b32 v%d, v%d offset:%d" % (vM, vW1, LDS_M))
            e("s_waitcnt lgkmcnt(0)")
            e("v_readfirstlane_b32 s%d, v%d" % (sT0, vT))
            e("s_cmp_lg_u32 s%d, 4" % sT0)
            e("s_cbranch_scc1 L_wmax")
            e("v_max_f32_dpp v%d, v%d, v%d row_ror:4 row_mask:0xf bank_mask:0xf" % (vM, vM, vM))
            e("s_nop 1")
            e("v_max_f32_dpp v%d, v%d, v%d row_ror:8 row_mask:0xf bank_mask:0xf" % (vM, vM, vM))
            e("v_mul_f32 v%d, s%d, v%d" % (vNM, sC, vM))
        def mkP(u):
            def f():
                e("v_fma_f32 v%d, v%d, s%d, -v%d" % (vP0, vS + 2 * u, sC, vNM))
                e("v_fma_f32 v%d, v%d, s%d, -v%d" % (vP1, vS + 2 * u + 1, sC, vNM))
                e("v_exp_f32 v%d, v%d" % (vP0, vP0))
                e("v_exp_f32 v%d, v%d" % (vP1, vP1))
                e("s_nop 0")
                e("v_cvt_pk_bf16_f32 v%d, v%d, v%d" % (vA, vP0, vP1))
                e("s_nop 1")
                e("v_mov_b32_dpp v%d, v%d row_ror:12 row_mask:0xf bank_mask:0xf" % (vA + 1, vA))
                e("v_mov_b32_dpp v%d, v%d row_ror:8 row_mask:0xf bank_mask:0xf" % (vA + 2, vA))
                e("v_mov_b32_dpp v%d, v%d row_ror:4 row_mask:0xf bank_mask:0xf" % (vA + 3, vA))
                e("s_nop 1")
                cc = "0" if u == 0 else "v[%d:%d]" % (vACCL, vACCL + 3)
                e("v_mfma_f32_16x16x32_bf16 v[%d:%d], v[%d:%d], v[%d:%d], %s" % (vACCL, vACCL + 3, vA, vA + 3, vQ, vQ + 3, cc))
            return f
        def mkC(u, half):
            base = NL + 8 * u
            def perms(i):
                F = vF + 4 * (i & 1)
                sel = sHI if (i & 1) else sLO
                for p in range(4):
                    e("v_perm_b32 v%d, v%d, v%d, s%d" % (F + p, slot(base + p + 4) + (i >> 1), slot(base + p) + (i >> 1), sel))
            def mf(i):
                F = vF + 4 * (i & 1)
                a = vACC + 4 * i
                cc = "0" if u == 0 else "v[%d:%d]" % (a, a + 3)
                e("v_mfma_f32_16x16x32_bf16 v[%d:%d], v[%d:%d], v[%d:%d], %s" % (a, a + 3, vA, vA + 3, F, F + 3, cc))
            def f():
                i0 = 4 * half
                perms(i0); perms(i0 + 1); mf(i0); perms(i0 + 2); mf(i0 + 1); perms(i0 + 3); mf(i0 + 2)
                e("s_nop 0")
                mf(i0 + 3)
            return f
        for q in range(NQ):
            bundles.append(("A%d" % q, ("ld", 4 * q + 3), list(range(4 * q, 4 * q + 4)), mkA(q)))
            bundles.append(("B%d" % q, None, [], mkB(q)))
        bundles.append(("T", None, [], trans))
        bundles.append(("T2", ("ld", NL + 12), [], trans2))
        for u in range(NU):
            bundles.append(("P%d" % u, None, [], mkP(u)))
            bundles.append(("C%d_0" % u, ("ld", NL + 8 * u + 7), [], mkC(u, 0)))
            bundles.append(("C%d_1" % u, None, list(range(NL + 8 * u, NL + 8 * u + 8)), mkC(u, 1)))

        def ev_setup():
            e("s_mov_b32 s%d, s8" % rV)
            e("s_and_b32 s%d, s9, 0xffff" % (rV + 1))
            e("s_mov_b32 s%d, 0x8000000" % (rV + 2))
            e("s_mov_b32 s%d, 0x20000" % (rV + 3))
            e("s_mov_b32 s%d, %s" % (sC, f32hex(cval)))
            e("s_mov_b32 s%d, 0x05040100" % sLO)
            e("s_mov_b32 s%d, 0x07060302" % sHI)
            e("s_mov_b32 s%d, s14" % rW)
            e("s_and_b32 s%d, s15, 0xffff" % (rW + 1))
            e("s_mov_b32 s%d, 0x%x" % (rW + 2, WSZ))
            e("s_mov_b32 s%d, 0x20000" % (rW + 3))
            e("s_mov_b32 s%d, s10" % rO)
            e("s_and_b32 s%d, s11, 0xffff" % (rO + 1))
            e("s_mov_b32 s%d, 0x10000" % (rO + 2))
            e("s_mov_b32 s%d, 0x20000" % (rO + 3))
            e("s_lshl_b32 s%d, s%d, 2" % (sT1, sT1))
            e("s_add_u32 s12, s12, s%d" % sT1)
            e("s_addc_u32 s13, s13, 0")
            e("s_lshl_b32 s%d, s%d, 10" % (sT0, sWave))
            e("s_lshl_b32 s%d, s2, 12" % sOwn)
            e("s_add_u32 s%d, s%d, s%d" % (sOwn, sOwn, sT0))
            for k in range(1, 4):
                e("s_xor_b32 s%d, s%d, %d" % (sRemOff + k - 1, sOwn, k << 12))
            e("v_and_b32 v%d, 3, v0" % vOa)
            e("v_lshlrev_b32 v%d, 9, v%d" % (vOa, vOa))
            e("v_bfe_u32 v%d, v0, 2, 4" % vMa)
            e("v_lshl_add_u32 v%d, v%d, 4, v%d" % (vOa, vMa, vOa))
            e("s_lshl_b32 s%d, s%d, 2" % (sT0, sWave))
            e("v_add_u32 v%d, s%d, v%d" % (vOa, sT0, vOa))
            e("v_mov_b32 v%d, s%d" % (vMa, sT0))
            e("s_lshl_b32 s%d, s%d, 8" % (sT0, sWave))
            e("s_add_u32 s%d, s%d, s%d" % (sT2, sT2, sT0))
            for r in range(4):
                e("v_mov_b32 v%d, 0" % (vZ + r))
            if 'noclr' in self.abl:
                e("s_mov_b32 s%d, 0x%x" % (sT0, OOB))
            else:
                e("s_mov_b32 s%d, s%d" % (sT0, sOwn))
            self.vmem("buffer_store_dwordx4 v[%d:%d], v%d, s[%d:%d], s%d offen sc1" %
                      (vZ, vZ + 3, vVoff, rW, rW + 3, sT0), ("clr", 3))
            e("ds_write_b64 v%d, v[%d:%d] offset:%d" % (vZ, vZ, vZ + 1, LDS_ROLE))
            e("s_waitcnt lgkmcnt(0)")
            e("s_barrier")
        def ev_ticket():
            if 'notick' in self.abl:
                e('s_mov_b32 s%d, 0' % sTick)
                return
            assert self.landed(("clr", 3))
            e("s_cmp_lg_u32 s%d, 0" % sWave)
            e("s_cbranch_scc1 L_notick")
            e("s_mov_b32 s%d, 1" % sTick)
            e("s_atomic_add s%d, s[12:13], 0 glc" % sTick)
            self.label("L_notick")
        def ev_role():
            e("s_cmp_lg_u32 s%d, 0" % sWave)
            e("s_cbranch_scc1 L_norole")
            e("s_waitcnt lgkmcnt(0)")
            e("s_add_u32 s%d, s%d, 1" % (sTick, sTick))
            e("v_mov_b32 v%d, s%d" % (vT, sTick))
            e("ds_write_b32 v%d, v%d offset:%d" % (vZ, vT, LDS_ROLE))
            self.label("L_norole")
        def rem_load(k, so, track=True):
            t2 = "buffer_load_dwordx4 v[%d:%d], v%d, s[%d:%d], s%d offen sc1" % (vRem + 4 * k, vRem + 4 * k + 3, vVoff, rW, rW + 3, so)
            if track:
                self.vmem(t2, ("rem", k, len(self.vm)))
            else:
                e(t2)
        def rem_loads():
            for k in range(3):
                rem_load(k, sUse + k)
        def ev_prefetch_a():
            e("ds_read_b32 v%d, v%d offset:%d" % (vT, vZ, LDS_ROLE))
        def ev_prefetch_b():
            e("s_waitcnt lgkmcnt(0)")
            e("v_readfirstlane_b32 s%d, v%d" % (sRole, vT))
            e("s_cmp_eq_u32 s%d, 4" % sRole)
            for k in range(3):
                e("s_cselect_b32 s%d, s%d, 0x%x" % (sUse + k, sRemOff + k, OOB))
            rem_loads()
        TOT = 2 * NL
        events = {int(self.tick * TOT): ev_ticket, int(self.role * TOT): ev_role}

        self.vmem("buffer_load_dwordx4 v[%d:%d], v%d, s[%d:%d], s%d offen" % (vQ, vQ + 3, vM, rQ, rQ + 3, sT2), "q")
        freed = set()
        bi = 0
        def emit_bundle(force):
            nonlocal bi
            name, need, frees, fn = bundles[bi]
            if need is not None and not self.landed(need):
                if not force:
                    return False
                self.wait_vm(need)
            self.c(name)
            if not ('nocomp' in self.abl and name[0] != 'T'):
                fn()
            freed.update(frees)
            bi += 1
            return True
        first = window(0)
        for x in range(TOT):
            while x >= NS and (x - NS) not in freed:
                emit_bundle(True)
            w = window(x)
            if x - w >= 0:
                self.wait_vm(("ld", x - w))
                if x - w == 3:
                    stamp()
            issue(x)
            if x == first - 1:
                ev_setup()
            if x in events:
                events[x]()
            n = 0
            while bi < len(bundles) and n < self.per_gap and emit_bundle(False):
                n += 1
        while bi < len(bundles):
            if bi == len(bundles) - 2:
                self.wait_vm(bundles[bi][1])
                ev_prefetch_a()
            emit_bundle(True)
            if bi == len(bundles) - self.pf:
                ev_prefetch_b()
        stamp()
        if 'noepi' in self.abl:
            e('s_waitcnt vmcnt(0)')
            e('s_endpgm')
        e("s_mul_i32 s%d, s%d, %d" % (sT0, sWave, OSTR))
        e("v_add_u32 v%d, s%d, v%d" % (vW0, sT0, vVoff))
        X = 44
        e("v_readlane_b32 s%d, v%d, s%d" % (sT1, vNM, sWave))
        e("s_mov_b64 exec, 1")
        e("ds_write_b128 v%d, v[%d:%d] offset:%d" % (vW0, vACCL, vACCL + 3, LDS_O + 2048))
        e("s_mov_b64 exec, 0xffff")
        for i in range(8):
            if i == 4:
                e("s_nop 1")
            e("ds_write_b128 v%d, v[%d:%d] offset:%d" % (vW0, vACC + 4 * i, vACC + 4 * i + 3, LDS_O + i * 256))
        e("s_mov_b64 exec, -1")
        e("v_mov_b32 v%d, s%d" % (X + 2, sT1))
        e("v_lshlrev_b32 v%d, 2, v%d" % (vW1, vLane))
        e("s_waitcnt lgkmcnt(0)")
        e("s_barrier")
        stamp()
        R = vS
        ll = lambda w: R + w
        oo = lambda w: R + 8 + 2 * w
        for w in range(4):
            for h in range(2):
                e("ds_read_b32 v%d, v%d offset:%d" % (oo(w) + h, vOa, LDS_O + w * OSTR + 256 * h))
        for w in range(4):
            e("ds_read_b32 v%d, v%d offset:%d" % (ll(w), vMa, LDS_O + w * OSTR + 2048))
        e("ds_read_b32 v%d, v%d offset:%d" % (vT, vZ, LDS_ROLE))
        e("s_waitcnt lgkmcnt(5)")
        for h in range(2):
            e("v_add_f32 v%d, v%d, v%d" % (X + h, oo(0) + h, oo(1) + h))
            e("v_add_f32 v%d, v%d, v%d" % (oo(2) + h, oo(2) + h, oo(3) + h))
        for h in range(2):
            e("v_add_f32 v%d, v%d, v%d" % (X + h, X + h, oo(2) + h))
        e("s_waitcnt lgkmcnt(0)")
        e("v_readfirstlane_b32 s%d, v%d" % (sRole, vT))
        e("v_add_f32 v%d, v%d, v%d" % (X + 3, ll(0), ll(1)))
        e("v_add_f32 v%d, v%d, v%d" % (ll(2), ll(2), ll(3)))
        e("v_add_f32 v%d, v%d, v%d" % (X + 3, X + 3, ll(2)))
        if 'nopub' in self.abl:
            e('s_endpgm')
        for r in range(4):
            e("v_or_b32 v%d, 1, v%d" % (X + r, X + r))
        e("s_cmp_eq_u32 s%d, 4" % sRole)
        e("s_cbranch_scc1 L_comb")
        e("buffer_store_dwordx4 v[%d:%d], v%d, s[%d:%d], s%d offen sc1" % (X, X + 3, vVoff, rW, rW + 3, sOwn))
        if 'stamp' in self.abl:
            sv = self.nst
            stamp(); stamp()
            stamp_store()
            self.nst = sv
        e("s_endpgm")
        self.label("L_comb")
        e("s_mov_b32 s%d, 0" % sCnt)
        T3 = 16
        self.label("L_chk")
        e("s_waitcnt vmcnt(0)")
        for k in range(3):
            e("v_and_b32 v%d, v%d, v%d" % (T3 + k, vRem + 4 * k, vRem + 4 * k + 1))
        for r in range(2, 4):
            for k in range(3):
                e("v_and_b32 v%d, v%d, v%d" % (T3 + k, T3 + k, vRem + 4 * k + r))
        e("v_and_b32 v%d, v%d, v%d" % (vT, T3, T3 + 1))
        e("v_and_b32 v%d, v%d, v%d" % (vT, vT, T3 + 2))
        e("v_and_b32 v%d, 1, v%d" % (vT, vT))
        e("v_cmp_ne_u32 vcc, 1, v%d" % vT)
        e("s_cbranch_vccz L_ok")
        if 'nopoll' in self.abl:
            e("s_branch L_ok")
        e("s_add_u32 s%d, s%d, 1" % (sCnt, sCnt))
        e("s_cmp_gt_u32 s%d, 0x100000" % sCnt)
        e("s_cbranch_scc1 L_ok")
        for k in range(3):
            e("v_and_b32 v%d, 1, v%d" % (vT, T3 + k))
            e("v_cmp_ne_u32 vcc, 1, v%d" % vT)
            e("s_cbranch_vccz L_skip%d" % k)
            rem_load(k, sRemOff + k, track=False)
            self.label("L_skip%d" % k)
        e("s_branch L_chk")
        self.label("L_ok")
        stamp()
        Rs = [X] + [vRem + 4 * k for k in range(3)]
        Mx, Ls, Oa = 16, 18, 20
        e("v_max3_f32 v%d, v%d, v%d, v%d" % (Mx, Rs[0] + 2, Rs[1] + 2, Rs[2] + 2))
        e("v_max_f32 v%d, v%d, v%d" % (Mx, Mx, Rs[3] + 2))
        for k in range(4):
            e("v_sub_f32 v%d, v%d, v%d" % (Rs[k] + 2, Rs[k] + 2, Mx))
        for k in range(4):
            e("v_exp_f32 v%d, v%d" % (Rs[k] + 2, Rs[k] + 2))
        for k in range(4):
            e("v_mul_f32 v%d, v%d, v%d" % (Rs[k] + 3, Rs[k] + 2, Rs[k] + 3))
        for k in range(4):
            for h in range(2):
                e("v_mul_f32 v%d, v%d, v%d" % (Rs[k] + h, Rs[k] + 2, Rs[k] + h))
        e("v_add_f32 v%d, v%d, v%d" % (Ls, Rs[0] + 3, Rs[1] + 3))
        e("v_add_f32 v%d, v%d, v%d" % (Ls + 1, Rs[2] + 3, Rs[3] + 3))
        e("v_add_f32 v%d, v%d, v%d" % (Ls, Ls, Ls + 1))
        e("v_rcp_f32 v%d, v%d" % (Ls, Ls))
        for h in range(2):
            e("v_add_f32 v%d, v%d, v%d" % (Oa + h, Rs[0] + h, Rs[1] + h))
            e("v_add_f32 v%d, v%d, v%d" % (Rs[2] + h, Rs[2] + h, Rs[3] + h))
        for h in range(2):
            e("v_add_f32 v%d, v%d, v%d" % (Oa + h, Oa + h, Rs[2] + h))
        for h in range(2):
            e("v_mul_f32 v%d, v%d, v%d" % (Oa + h, Oa + h, Ls))
        e("v_cvt_pk_bf16_f32 v%d, v%d, v%d" % (Oa, Oa, Oa + 1))
        if 'noout' not in self.abl:
            e("buffer_store_dword v%d, v%d, s[%d:%d], s%d offen%s" % (Oa, vW1, rO, rO + 3, sT2, self.ost))
        if 'stamp' in self.abl:
            e("s_waitcnt vmcnt(0)")
            stamp()
            e("s_mov_b32 s%d, s%d" % (60 + 2 * 7, sCnt))
            self.nst = 8
            stamp_store()
        if 'amp' in self.abl:
            e("s_waitcnt vmcnt(0)")
            e("s_memrealtime s[62:63]")
            e("s_waitcnt lgkmcnt(0)")
            e("s_sub_u32 s64, s62, s60")
            e("s_max_u32 s64, s64, 3400")
            e("s_sub_u32 s64, s64, 3400")
            e("s_min_u32 s64, s64, 5000")
            e("s_lshl_b32 s64, s64, 3")
            self.label("L_amp")
            e("s_memrealtime s[66:67]")
            e("s_waitcnt lgkmcnt(0)")
            e("s_sub_u32 s65, s66, s62")
            e("s_cmp_lt_u32 s65, s64")
            e("s_cbranch_scc1 L_amp")
        self.label("L_end")
        e("s_endpgm")

    def text(self):
        self.build()
        hdr = open("standalone__gqa_softmax__sampling.s.ref").read().split("; @launch")[0]
        out = hdr
        out += "; @launch grid=(256,1,1) block=(256,1,1) lds=%d\n" % (self.lds_bytes)
        out += "; ---------------------------------------------------------------------------------------------\n;  loads   : nt, paced with counted vmcnt (5 KiB in flight per wave, 8 KiB for the last 30 %).\n; ---------------------------------------------------------------------------------------------\n"
        out += '.amdgcn_target "amdgcn-amd-amdhsa--gfx950"\n.text\n'
        k = self.name + "_kernel"
        out += ".globl %s\n.p2align 8\n.type %s,@function\n%s:\n" % (k, k, k)
        out += "\n".join(self.lines) + "\n"
        acc = (self.nvgpr + 3) // 4 * 4
        out += """.section .rodata,"a"
.p2align 6
.amdhsa_kernel %s
  .amdhsa_next_free_vgpr %d
  .amdhsa_next_free_sgpr %d
  .amdhsa_accum_offset %d
  .amdhsa_group_segment_fixed_size 0
  .amdhsa_kernarg_size 48
  .amdhsa_user_sgpr_count 2
  .amdhsa_user_sgpr_kernarg_segment_ptr 1
  .amdhsa_system_sgpr_workgroup_id_x 1
.end_amdhsa_kernel
""" % (k, self.nvgpr, 80 if ("stamp" in self.abl or "amp" in self.abl) else 56, acc)
        return out

if __name__ == "__main__":
    ap = argparse.ArgumentParser()
    ap.add_argument("--w1", type=int, default=5)
    ap.add_argument("--w2", type=int, default=8)
    ap.add_argument("--w0", type=int, default=None)
    ap.add_argument("--frac", type=float, default=0.7)
    ap.add_argument("--ns", type=int, default=24)
    ap.add_argument("--abl", default="")
    ap.add_argument("--tick", type=float, default=0.96)
    ap.add_argument("--role", type=float, default=0.99)
    ap.add_argument("--pg", type=int, default=1)
    ap.add_argument("--pf", type=int, default=0)
    ap.add_argument("--mix", type=int, default=0)
    ap.add_argument("--ost", default=" sc1")
    ap.add_argument("--ldspad", type=int, default=0)
    ap.add_argument("-o", default="standalone__gqa_softmax__sampling.s")
    a = ap.parse_args()
    g = Gen(W1=a.w1, W2=a.w2, frac=a.frac, NS=a.ns, abl=a.abl, tick=a.tick, role=a.role, W0=a.w0, per_gap=a.pg, pf=a.pf, mix=a.mix, ost=a.ost, ldspad=a.ldspad)
    open(a.o, "w").write(g.text())
    print("vgprs", g.nvgpr, "lds", g.lds_bytes, "lines", len(g.lines))
```

```python
import struct, sys, math, argparse

def f32hex(x):
    return "0x%08x" % struct.unpack("<I", struct.pack("<f", x))[0]

class Gen:
    def __init__(self, W1=5, W2=8, frac=0.7, NS=24, ld=" nt", abl="", tick=0.86, role=0.93, W0=None, per_gap=1, pf=0, mix=0, ost=' sc1', ldspad=0, W3=0, frac3=1.0, xr=0, pat='w0,w1,t4,t0,t1,t2,t3,s0,s1', xors='w0>14,s0>12,s1>13', M='s0,s1,p0,p1,p2,p3,p4,p5',
                 name="standalone__gqa_softmax__sampling"):
        self.W1, self.W2, self.frac, self.NS = W1, W2, frac, NS
        self.W0 = W0
        self.ld, self.abl, self.name = ld, abl, name
        self.tick, self.role = tick, role
        self.per_gap = per_gap
        self.pf = pf
        self.mix = mix
        self.ost = ost
        self.ldspad = ldspad
        self.W3, self.frac3 = W3, frac3
        self.xr = xr
        self.pat = pat.split(',')
        self.M = M.split(',')
        self.xors = [x for x in xors.split(',') if x]
        self.lines = []
        self.vm = []

    def e(self, s): self.lines.append("    " + s)
    def label(self, s): self.lines.append(s + ":")
    def c(self, s): self.lines.append("    ; " + s)
    def vmem(self, text, tag):
        self.e(text); self.vm.append(tag)
    def outstanding_after(self, tag):
        return len(self.vm) - 1 - self.vm.index(tag)
    def wait_vm(self, tag):
        n = self.outstanding_after(tag)
        assert n <= 63
        if self.known >= self.vm.index(tag):
            return
        self.e("s_waitcnt vmcnt(%d)" % n)
        self.known = self.vm.index(tag)
    def wait_cnt(self, n):
        idx = len(self.vm) - 1 - n
        if idx >= 0 and self.known < idx:
            self.e("s_waitcnt vmcnt(%d)" % n)
            self.known = idx
    def landed(self, tag):
        return tag in self.vm and self.vm.index(tag) <= self.known

    def build(self):
        NW = 4
        KPW = 512
        NL = KPW // 4
        NQ = KPW // 16
        NU = KPW // 32
        NS = self.NS
        self.known = -1
        e = self.e
        vKoff, vVoff, vLane = 1, 2, 3
        vQ = 4
        vACC = 8
        vACCL = 40
        vA = 44
        vF = 48
        vM, vW0, vW1, vT = 56, 57, 58, 59
        vNM = 60
        vP0, vP1 = 61, 62
        vZ = 64
        vRem = 68
        vRemO = 80
        vOa, vMa = 86, 87
        vS = 88
        vWIN = 120
        nvgpr = vWIN + 4 * NS
        assert nvgpr <= 256
        self.nvgpr = nvgpr
        slot = lambda x: vWIN + 4 * (x % NS)
        rK, rV, rQ, rW, rO = 16, 20, 24, 28, 32
        sOffK, sOffV = 36, 37
        sC, sLO, sHI = 38, 39, 40
        sT0, sT1, sT2 = 41, 42, 43
        sWave, sTick, sRole = 44, 45, 46
        sRemOff = 47
        sUse = 50
        sOwn = 53
        sCnt = 54
        sD = 12
        LDS_ROLE = 0
        LDS_CNT = 4
        LDS_M = 64
        LDS_O = 128
        OSTR = 2064
        self.lds_bytes = max(LDS_O + NW * OSTR, self.ldspad)
        cval = math.log2(math.e) / math.sqrt(128.0)
        WSZ = 0x100000 if 'stamp' not in self.abl else 0x200000
        OOB = 0x7000000

        self.nst = 0
        def stamp():
            if 'stamp' in self.abl:
                e("s_memrealtime s[%d:%d]" % (60 + 2 * self.nst, 61 + 2 * self.nst))
                self.nst += 1
        def stamp_store():
            if 'stamp' in self.abl:
                e("s_waitcnt lgkmcnt(0)")
                e("s_mov_b64 exec, 1")
                for i in range(8):
                    e("v_mov_b32 v%d, s%d" % (16 + i, 60 + 2 * i if i < self.nst else 60))
                e("s_lshl_b32 s%d, s2, 7" % sT0)
                e("s_lshl_b32 s%d, s%d, 5" % (sT1, sWave))
                e("s_add_u32 s%d, s%d, s%d" % (sT0, sT0, sT1))
                e("s_add_u32 s%d, s%d, 0x100000" % (sT0, sT0))
                e("v_mov_b32 v24, 0")
                e("buffer_store_dwordx4 v[16:19], v24, s[%d:%d], s%d offen" % (rW, rW + 3, sT0))
                e("buffer_store_dwordx4 v[20:23], v24, s[%d:%d], s%d offen offset:16" % (rW, rW + 3, sT0))
                e("s_mov_b64 exec, -1")

        stamp()
        if 'ampl' in self.abl:
            e("s_memrealtime s[60:61]")
        e("s_load_dwordx4 s[4:7], s[0:1], 0")
        e("s_load_dwordx4 s[8:11], s[0:1], 16")
        e("s_load_dwordx4 s[12:15], s[0:1], 32")
        e("s_cmp_ge_u32 s2, 256")
        e("s_cbranch_scc1 L_end")
        order = ['s0', 's1', 'p0', 'p1', 'p2', 'p3', 'p4', 'p5']
        assert sorted(self.M) == sorted(order)
        if self.M != order:
            keep = sum(1 << i for i, tok in enumerate(self.M) if order[i] == tok)
            e("s_and_b32 s3, s2, 0x%x" % keep)
            for i, tok in enumerate(self.M):
                if order[i] != tok:
                    e("s_bitcmp1_b32 s2, %d" % i)
                    e("s_cselect_b32 s%d, 0x%x, 0" % (sT0, 1 << order.index(tok)))
                    e("s_or_b32 s3, s3, s%d" % sT0)
            e("s_mov_b32 s2, s3")
        e("v_and_b32 v%d, 63, v0" % vLane)
        e("v_lshrrev_b32 v%d, 6, v0" % vT)
        e("v_and_b32 v%d, 3, v0" % vW1)
        e("v_bfe_u32 v%d, v0, 2, 2" % vW0)
        e("v_bfe_u32 v%d, v0, 4, 2" % vNM)
        e("v_lshlrev_b32 v%d, 6, v%d" % (vNM, vNM))
        e("v_readfirstlane_b32 s%d, v%d" % (sWave, vT))
        e("v_lshl_add_u32 v%d, v%d, 4, v%d" % (vKoff, vW1, vNM))
        e("v_lshl_add_u32 v%d, v%d, 8, v%d" % (vKoff, vW0, vKoff))
        e("v_lshl_add_u32 v%d, v%d, 8, v%d" % (vM, vW1, vNM))
        e("v_lshl_add_u32 v%d, v%d, 4, v%d" % (vM, vW0, vM))
        e("v_lshlrev_b32 v%d, 4, v%d" % (vVoff, vLane))
        pos = {tok: 12 + i for i, tok in enumerate(self.pat)}
        contrib = {"w0": 1 << pos["w0"], "w1": 1 << pos["w1"], "s0": 1 << pos["s0"], "s1": 1 << pos["s1"]}
        for x_ in self.xors:
            a_, b_ = x_.split(">")
            contrib[a_] ^= 1 << int(b_)
        sBase = 55
        e("s_lshr_b32 s%d, s2, 2" % sBase)
        e("s_lshl_b32 s%d, s%d, 21" % (sBase, sBase))
        for tok, src, b_ in (("s0", 2, 0), ("s1", 2, 1), ("w0", sWave, 0), ("w1", sWave, 1)):
            e("s_bitcmp1_b32 s%d, %d" % (src, b_))
            e("s_cselect_b32 s%d, 0x%x, 0" % (sT0, contrib[tok]))
            e("s_xor_b32 s%d, s%d, s%d" % (sBase, sBase, sT0))
        tmask = lambda t_: sum(((t_ >> i) & 1) << pos["t%d" % i] for i in range(5))
        seen = set()
        for w_ in range(4):
            for s_ in range(4):
                for t_ in range(32):
                    a_ = tmask(t_)
                    for tok, bit in (("w0", w_ & 1), ("w1", w_ >> 1), ("s0", s_ & 1), ("s1", s_ >> 1)):
                        if bit:
                            a_ ^= contrib[tok]
                    seen.add(a_)
        assert len(seen) == 512 and max(seen) < (1 << 21) and min(x_ & 0xfff for x_ in seen) == 0
        e("s_lshr_b32 s%d, s2, 2" % sT1)
        e("s_lshl_b32 s%d, s%d, 10" % (sT2, sT1))
        e("s_mov_b32 s%d, 0x8000000" % (rK + 2))
        e("s_mov_b32 s%d, 0x20000" % (rK + 3))
        e("s_mov_b32 s%d, 0x10000" % (rQ + 2))
        e("s_mov_b32 s%d, 0x20000" % (rQ + 3))
        e("s_waitcnt lgkmcnt(0)")
        e("s_mov_b32 s%d, s6" % rK)
        e("s_and_b32 s%d, s7, 0xffff" % (rK + 1))
        e("s_mov_b32 s%d, s4" % rQ)
        e("s_and_b32 s%d, s5, 0xffff" % (rQ + 1))
        gstride = 4096 * NW
        st = {"k": 0, "v": 0}
        def issue(x):
            r = slot(x)
            if x < NL:
                grp, j = divmod(x, 4)
                if j == 0 and grp:
                    e("s_xor_b32 s%d, s%d, 0x%x" % (sOffK, sBase, tmask(grp)))
                so = sOffK if grp else sBase
                self.vmem("buffer_load_dwordx4 v[%d:%d], v%d, s[%d:%d], s%d offen offset:%d%s" %
                          (r, r + 3, vKoff, rK, rK + 3, so, j * 1024, self.ld), ("ld", x))
            else:
                grp, j = divmod(x - NL, 4)
                if j == 0 and grp:
                    e("s_xor_b32 s%d, s%d, 0x%x" % (sOffV, sBase, tmask(grp)))
                so = sOffV if grp else sBase
                self.vmem("buffer_load_dwordx4 v[%d:%d], v%d, s[%d:%d], s%d offen offset:%d%s" %
                          (r, r + 3, vVoff, rV, rV + 3, so, j * 1024, self.ld), ("ld", x))
        def window(x):
            if self.W0 is not None and x < self.W0:
                return self.W0
            if x < self.frac * 2 * NL:
                return self.W1 + (1 if (self.mix and x > 8 and x % self.mix == 0) else 0)
            if self.W3 and x >= self.frac3 * 2 * NL:
                return self.W3
            return self.W2

        bundles = []
        D = vACC
        def mkA(q):
            def f():
                for j in range(4):
                    r = slot(4 * q + j)
                    e("v_mfma_f32_16x16x32_bf16 v[%d:%d], v[%d:%d], v[%d:%d], 0" %
                      (D + 4 * j, D + 4 * j + 3, r, r + 3, vQ, vQ + 3))
                e("s_nop 4")
            return f
        def mkB(q):
            def f():
                d = lambda j, r: D + 4 * j + r
                rot = "row_ror:12"
                e("s_nop 2")
                for (w, j0) in ((vW0, 0), (vW1, 2)):
                    e("v_add_f32_dpp v%d, v%d, v%d %s row_mask:0xf bank_mask:0x1" % (w, d(j0, 1), d(j0, 0), rot))
                    e("v_add_f32_dpp v%d, v%d, v%d %s row_mask:0xf bank_mask:0x4" % (w, d(j0, 3), d(j0, 2), rot))
                    e("v_add_f32_dpp v%d, v%d, v%d %s row_mask:0xf bank_mask:0x2" % (w, d(j0 + 1, 2), d(j0 + 1, 1), rot))
                    e("v_add_f32_dpp v%d, v%d, v%d %s row_mask:0xf bank_mask:0x8" % (w, d(j0 + 1, 0), d(j0 + 1, 3), rot))
                e("v_add_f32_dpp v%d, v%d, v%d row_ror:8 row_mask:0xf bank_mask:0x3" % (vS + q, vW0, vW0))
                e("s_nop 0")
                e("v_add_f32_dpp v%d, v%d, v%d row_ror:8 row_mask:0xf bank_mask:0xc" % (vS + q, vW1, vW1))
                if q == 0:
                    e("v_mov_b32 v%d, v%d" % (vM, vS))
                else:
                    e("v_max_f32 v%d, v%d, v%d" % (vM, vM, vS + q))
            return f
        def xlane_max(v, t):
            e("s_nop 1")
            e("v_max_f32_dpp v%d, v%d, v%d row_ror:4 row_mask:0xf bank_mask:0xf" % (v, v, v))
            e("s_nop 1")
            e("v_max_f32_dpp v%d, v%d, v%d row_ror:8 row_mask:0xf bank_mask:0xf" % (v, v, v))
            e("v_mov_b32 v%d, v%d" % (t, v))
            e("s_nop 1")
            e("v_permlane16_swap_b32 v%d, v%d" % (v, t))
            e("v_max_f32 v%d, v%d, v%d" % (v, v, t))
            e("v_mov_b32 v%d, v%d" % (t, v))
            e("s_nop 1")
            e("v_permlane32_swap_b32 v%d, v%d" % (v, t))
            e("v_max_f32 v%d, v%d, v%d" % (v, v, t))
        def trans():
            assert self.landed(("clr", 3))
            stamp()
            xlane_max(vM, vW0)
            e("v_and_b32 v%d, 15, v%d" % (vW1, vLane))
            e("v_lshlrev_b32 v%d, 2, v%d" % (vW1, vW1))
            e("s_lshl_b32 s%d, s%d, 4" % (sT0, sWave))
            e("v_add_u32 v%d, s%d, v%d" % (vW0, sT0, vW1))
            e("v_mov_b32 v%d, 1" % vT)
            e("s_mov_b64 exec, 0xf")
            e("ds_write_b32 v%d, v%d offset:%d" % (vW0, vM, LDS_M))
            e("s_mov_b64 exec, 1")
            e("ds_add_u32 v%d, v%d offset:%d" % (vZ, vT, LDS_CNT))
            e("s_mov_b64 exec, -1")
            for r in range(4):
                e("v_mov_b32 v%d, 0x3f803f80" % (vQ + r))
        def trans2():
            self.label("L_wmax")
            e("ds_read_b32 v%d, v%d offset:%d" % (vT, vZ, LDS_CNT))
            e("ds_read_b32 v%d, v%d offset:%d" % (vM, vW1, LDS_M))
            e("s_waitcnt lgkmcnt(0)")
            e("v_readfirstlane_b32 s%d, v%d" % (sT0, vT))
            e("s_cmp_lg_u32 s%d, 4" % sT0)
            e("s_cbranch_scc1 L_wmax")
            e("v_max_f32_dpp v%d, v%d, v%d row_ror:4 row_mask:0xf bank_mask:0xf" % (vM, vM, vM))
            e("s_nop 1")
            e("v_max_f32_dpp v%d, v%d, v%d row_ror:8 row_mask:0xf bank_mask:0xf" % (vM, vM, vM))
            e("v_mul_f32 v%d, s%d, v%d" % (vNM, sC, vM))
        def mkP(u):
            def f():
                e("v_fma_f32 v%d, v%d, s%d, -v%d" % (vP0, vS + 2 * u, sC, vNM))
                e("v_fma_f32 v%d, v%d, s%d, -v%d" % (vP1, vS + 2 * u + 1, sC, vNM))
                e("v_exp_f32 v%d, v%d" % (vP0, vP0))
                e("v_exp_f32 v%d, v%d" % (vP1, vP1))
                e("s_nop 0")
                e("v_cvt_pk_bf16_f32 v%d, v%d, v%d" % (vA, vP0, vP1))
                e("s_nop 1")
                e("v_mov_b32_dpp v%d, v%d row_ror:12 row_mask:0xf bank_mask:0xf" % (vA + 1, vA))
                e("v_mov_b32_dpp v%d, v%d row_ror:8 row_mask:0xf bank_mask:0xf" % (vA + 2, vA))
                e("v_mov_b32_dpp v%d, v%d row_ror:4 row_mask:0xf bank_mask:0xf" % (vA + 3, vA))
                e("s_nop 1")
                cc = "0" if u == 0 else "v[%d:%d]" % (vACCL, vACCL + 3)
                e("v_mfma_f32_16x16x32_bf16 v[%d:%d], v[%d:%d], v[%d:%d], %s" % (vACCL, vACCL + 3, vA, vA + 3, vQ, vQ + 3, cc))
            return f
        def mkC(u, half):
            base = NL + 8 * u
            def perms(i):
                F = vF + 4 * (i & 1)
                sel = sHI if (i & 1) else sLO
                for p in range(4):
                    e("v_perm_b32 v%d, v%d, v%d, s%d" % (F + p, slot(base + p + 4) + (i >> 1), slot(base + p) + (i >> 1), sel))
            def mf(i):
                F = vF + 4 * (i & 1)
                a = vACC + 4 * i
                cc = "0" if u == 0 else "v[%d:%d]" % (a, a + 3)
                e("v_mfma_f32_16x16x32_bf16 v[%d:%d], v[%d:%d], v[%d:%d], %s" % (a, a + 3, vA, vA + 3, F, F + 3, cc))
            def f():
                i0 = 4 * half
                perms(i0); perms(i0 + 1); mf(i0); perms(i0 + 2); mf(i0 + 1); perms(i0 + 3); mf(i0 + 2)
                e("s_nop 0")
                mf(i0 + 3)
            return f
        for q in range(NQ):
            bundles.append(("A%d" % q, ("ld", 4 * q + 3), list(range(4 * q, 4 * q + 4)), mkA(q)))
            bundles.append(("B%d" % q, None, [], mkB(q)))
        bundles.append(("T", None, [], trans))
        bundles.append(("T2", ("ld", NL + 12), [], trans2))
        for u in range(NU):
            bundles.append(("P%d" % u, None, [], mkP(u)))
            bundles.append(("C%d_0" % u, ("ld", NL + 8 * u + 7), [], mkC(u, 0)))
            bundles.append(("C%d_1" % u, None, list(range(NL + 8 * u, NL + 8 * u + 8)), mkC(u, 1)))

        def ev_setup():
            e("s_mov_b32 s%d, s8" % rV)
            e("s_and_b32 s%d, s9, 0xffff" % (rV + 1))
            e("s_mov_b32 s%d, 0x8000000" % (rV + 2))
            e("s_mov_b32 s%d, 0x20000" % (rV + 3))
            e("s_mov_b32 s%d, %s" % (sC, f32hex(cval)))
            e("s_mov_b32 s%d, 0x05040100" % sLO)
            e("s_mov_b32 s%d, 0x07060302" % sHI)
            e("s_mov_b32 s%d, s14" % rW)
            e("s_and_b32 s%d, s15, 0xffff" % (rW + 1))
            e("s_mov_b32 s%d, 0x%x" % (rW + 2, WSZ))
            e("s_mov_b32 s%d, 0x20000" % (rW + 3))
            e("s_mov_b32 s%d, s10" % rO)
            e("s_and_b32 s%d, s11, 0xffff" % (rO + 1))
            e("s_mov_b32 s%d, 0x10000" % (rO + 2))
            e("s_mov_b32 s%d, 0x20000" % (rO + 3))
            e("s_lshl_b32 s%d, s%d, 2" % (sT1, sT1))
            e("s_add_u32 s12, s12, s%d" % sT1)
            e("s_addc_u32 s13, s13, 0")
            e("s_lshl_b32 s%d, s%d, 10" % (sT0, sWave))
            e("s_lshl_b32 s%d, s2, 12" % sOwn)
            e("s_add_u32 s%d, s%d, s%d" % (sOwn, sOwn, sT0))
            for k in range(1, 4):
                e("s_xor_b32 s%d, s%d, %d" % (sRemOff + k - 1, sOwn, k << 12))
            e("v_and_b32 v%d, 3, v0" % vOa)
            e("v_lshlrev_b32 v%d, 9, v%d" % (vOa, vOa))
            e("v_bfe_u32 v%d, v0, 2, 4" % vMa)
            e("v_lshl_add_u32 v%d, v%d, 4, v%d" % (vOa, vMa, vOa))
            e("s_lshl_b32 s%d, s%d, 2" % (sT0, sWave))
            e("v_add_u32 v%d, s%d, v%d" % (vOa, sT0, vOa))
            e("v_mov_b32 v%d, s%d" % (vMa, sT0))
            e("s_lshl_b32 s%d, s%d, 8" % (sT0, sWave))
            e("s_add_u32 s%d, s%d, s%d" % (sT2, sT2, sT0))
            for r in range(4):
                e("v_mov_b32 v%d, 0" % (vZ + r))
            if 'noclr' in self.abl:
                e("s_mov_b32 s%d, 0x%x" % (sT0, OOB))
            else:
                e("s_mov_b32 s%d, s%d" % (sT0, sOwn))
            self.vmem("buffer_store_dwordx4 v[%d:%d], v%d, s[%d:%d], s%d offen sc1" %
                      (vZ, vZ + 3, vVoff, rW, rW + 3, sT0), ("clr", 3))
            e("ds_write_b64 v%d, v[%d:%d] offset:%d" % (vZ, vZ, vZ + 1, LDS_ROLE))
            e("s_waitcnt lgkmcnt(0)")
            e("s_barrier")
        def ev_ticket():
            if 'notick' in self.abl:
                e('s_mov_b32 s%d, 0' % sTick)
                return
            assert self.landed(("clr", 3))
            e("s_cmp_lg_u32 s%d, 0" % sWave)
            e("s_cbranch_scc1 L_notick")
            e("s_mov_b32 s%d, 1" % sTick)
            e("s_atomic_add s%d, s[12:13], 0 glc" % sTick)
            self.label("L_notick")
        def ev_role():
            e("s_cmp_lg_u32 s%d, 0" % sWave)
            e("s_cbranch_scc1 L_norole")
            e("s_waitcnt lgkmcnt(0)")
            e("s_add_u32 s%d, s%d, 1" % (sTick, sTick))
            e("v_mov_b32 v%d, s%d" % (vT, sTick))
            e("ds_write_b32 v%d, v%d offset:%d" % (vZ, vT, LDS_ROLE))
            self.label("L_norole")
        def rem_load(k, so, track=True):
            t2 = "buffer_load_dwordx4 v[%d:%d], v%d, s[%d:%d], s%d offen sc1" % (vRem + 4 * k, vRem + 4 * k + 3, vVoff, rW, rW + 3, so)
            if track:
                self.vmem(t2, ("rem", k, len(self.vm)))
            else:
                e(t2)
        def rem_loads():
            for k in range(3):
                rem_load(k, sUse + k)
        def ev_prefetch_a():
            e("ds_read_b32 v%d, v%d offset:%d" % (vT, vZ, LDS_ROLE))
        def ev_prefetch_b():
            e("s_waitcnt lgkmcnt(0)")
            e("v_readfirstlane_b32 s%d, v%d" % (sRole, vT))
            e("s_cmp_eq_u32 s%d, 4" % sRole)
            for k in range(3):
                e("s_cselect_b32 s%d, s%d, 0x%x" % (sUse + k, sRemOff + k, OOB))
            rem_loads()
        TOT = 2 * NL
        events = {int(self.tick * TOT): ev_ticket, int(self.role * TOT): ev_role}

        self.vmem("buffer_load_dwordx4 v[%d:%d], v%d, s[%d:%d], s%d offen" % (vQ, vQ + 3, vM, rQ, rQ + 3, sT2), "q")
        freed = set()
        bi = 0
        def emit_bundle(force):
            nonlocal bi
            name, need, frees, fn = bundles[bi]
            if need is not None and not self.landed(need):
                if not force:
                    return False
                self.wait_vm(need)
            self.c(name)
            if not ('nocomp' in self.abl and name[0] != 'T'):
                fn()
            freed.update(frees)
            bi += 1
            return True
        first = window(0)
        for x in range(TOT):
            while x >= NS and (x - NS) not in freed:
                emit_bundle(True)
            w = window(x)
            if x - w >= 0:
                self.wait_vm(("ld", x - w))
                if x - w == 3:
                    stamp()
            issue(x)
            if x == first - 1:
                ev_setup()
            if x in events:
                events[x]()
            n = 0
            while bi < len(bundles) and n < self.per_gap and emit_bundle(False):
                n += 1
        while bi < len(bundles):
            if bi == len(bundles) - 2:
                self.wait_vm(bundles[bi][1])
                ev_prefetch_a()
            emit_bundle(True)
            if bi == len(bundles) - self.pf:
                ev_prefetch_b()
        stamp()
        if 'noepi' in self.abl:
            e('s_waitcnt vmcnt(0)')
            e('s_endpgm')
        e("s_mul_i32 s%d, s%d, %d" % (sT0, sWave, OSTR))
        e("v_add_u32 v%d, s%d, v%d" % (vW0, sT0, vVoff))
        X = 44
        e("v_readlane_b32 s%d, v%d, s%d" % (sT1, vNM, sWave))
        e("s_mov_b64 exec, 1")
        e("ds_write_b128 v%d, v[%d:%d] offset:%d" % (vW0, vACCL, vACCL + 3, LDS_O + 2048))
        e("s_mov_b64 exec, 0xffff")
        for i in range(8):
            if i == 4:
                e("s_nop 1")
            e("ds_write_b128 v%d, v[%d:%d] offset:%d" % (vW0, vACC + 4 * i, vACC + 4 * i + 3, LDS_O + i * 256))
        e("s_mov_b64 exec, -1")
        e("v_mov_b32 v%d, s%d" % (X + 2, sT1))
        e("v_lshlrev_b32 v%d, 2, v%d" % (vW1, vLane))
        e("s_waitcnt lgkmcnt(0)")
        e("s_barrier")
        stamp()
        R = vS
        ll = lambda w: R + w
        oo = lambda w: R + 8 + 2 * w
        for w in range(4):
            for h in range(2):
                e("ds_read_b32 v%d, v%d offset:%d" % (oo(w) + h, vOa, LDS_O + w * OSTR + 256 * h))
        for w in range(4):
            e("ds_read_b32 v%d, v%d offset:%d" % (ll(w), vMa, LDS_O + w * OSTR + 2048))
        e("ds_read_b32 v%d, v%d offset:%d" % (vT, vZ, LDS_ROLE))
        e("s_waitcnt lgkmcnt(5)")
        for h in range(2):
            e("v_add_f32 v%d, v%d, v%d" % (X + h, oo(0) + h, oo(1) + h))
            e("v_add_f32 v%d, v%d, v%d" % (oo(2) + h, oo(2) + h, oo(3) + h))
        for h in range(2):
            e("v_add_f32 v%d, v%d, v%d" % (X + h, X + h, oo(2) + h))
        e("s_waitcnt lgkmcnt(0)")
        e("v_readfirstlane_b32 s%d, v%d" % (sRole, vT))
        e("v_add_f32 v%d, v%d, v%d" % (X + 3, ll(0), ll(1)))
        e("v_add_f32 v%d, v%d, v%d" % (ll(2), ll(2), ll(3)))
        e("v_add_f32 v%d, v%d, v%d" % (X + 3, X + 3, ll(2)))
        if 'nopub' in self.abl:
            e('s_endpgm')
        for r in range(4):
            e("v_or_b32 v%d, 1, v%d" % (X + r, X + r))
        e("s_cmp_eq_u32 s%d, 4" % sRole)
        e("s_cbranch_scc1 L_comb")
        e("buffer_store_dwordx4 v[%d:%d], v%d, s[%d:%d], s%d offen sc1" % (X, X + 3, vVoff, rW, rW + 3, sOwn))
        if 'stamp' in self.abl:
            sv = self.nst
            stamp(); stamp()
            stamp_store()
            self.nst = sv
        e("s_endpgm")
        self.label("L_comb")
        e("s_mov_b32 s%d, 0" % sCnt)
        T3 = 16
        self.label("L_chk")
        e("s_waitcnt vmcnt(0)")
        for k in range(3):
            e("v_and_b32 v%d, v%d, v%d" % (T3 + k, vRem + 4 * k, vRem + 4 * k + 1))
        for r in range(2, 4):
            for k in range(3):
                e("v_and_b32 v%d, v%d, v%d" % (T3 + k, T3 + k, vRem + 4 * k + r))
        e("v_and_b32 v%d, v%d, v%d" % (vT, T3, T3 + 1))
        e("v_and_b32 v%d, v%d, v%d" % (vT, vT, T3 + 2))
        e("v_and_b32 v%d, 1, v%d" % (vT, vT))
        e("v_cmp_ne_u32 vcc, 1, v%d" % vT)
        e("s_cbranch_vccz L_ok")
        if 'nopoll' in self.abl:
            e("s_branch L_ok")
        e("s_add_u32 s%d, s%d, 1" % (sCnt, sCnt))
        e("s_cmp_gt_u32 s%d, 0x100000" % sCnt)
        e("s_cbranch_scc1 L_ok")
        for k in range(3):
            e("v_and_b32 v%d, 1, v%d" % (vT, T3 + k))
            e("v_cmp_ne_u32 vcc, 1, v%d" % vT)
            e("s_cbranch_vccz L_skip%d" % k)
            rem_load(k, sRemOff + k, track=False)
            self.label("L_skip%d" % k)
        e("s_branch L_chk")
        self.label("L_ok")
        stamp()
        Rs = [X] + [vRem + 4 * k for k in range(3)]
        Mx, Ls, Oa = 16, 18, 20
        e("v_max3_f32 v%d, v%d, v%d, v%d" % (Mx, Rs[0] + 2, Rs[1] + 2, Rs[2] + 2))
        e("v_max_f32 v%d, v%d, v%d" % (Mx, Mx, Rs[3] + 2))
        for k in range(4):
            e("v_sub_f32 v%d, v%d, v%d" % (Rs[k] + 2, Rs[k] + 2, Mx))
        for k in range(4):
            e("v_exp_f32 v%d, v%d" % (Rs[k] + 2, Rs[k] + 2))
        for k in range(4):
            e("v_mul_f32 v%d, v%d, v%d" % (Rs[k] + 3, Rs[k] + 2, Rs[k] + 3))
        for k in range(4):
            for h in range(2):
                e("v_mul_f32 v%d, v%d, v%d" % (Rs[k] + h, Rs[k] + 2, Rs[k] + h))
        e("v_add_f32 v%d, v%d, v%d" % (Ls, Rs[0] + 3, Rs[1] + 3))
        e("v_add_f32 v%d, v%d, v%d" % (Ls + 1, Rs[2] + 3, Rs[3] + 3))
        e("v_add_f32 v%d, v%d, v%d" % (Ls, Ls, Ls + 1))
        e("v_rcp_f32 v%d, v%d" % (Ls, Ls))
        for h in range(2):
            e("v_add_f32 v%d, v%d, v%d" % (Oa + h, Rs[0] + h, Rs[1] + h))
            e("v_add_f32 v%d, v%d, v%d" % (Rs[2] + h, Rs[2] + h, Rs[3] + h))
        for h in range(2):
            e("v_add_f32 v%d, v%d, v%d" % (Oa + h, Oa + h, Rs[2] + h))
        for h in range(2):
            e("v_mul_f32 v%d, v%d, v%d" % (Oa + h, Oa + h, Ls))
        e("v_cvt_pk_bf16_f32 v%d, v%d, v%d" % (Oa, Oa, Oa + 1))
        if 'noout' not in self.abl:
            e("buffer_store_dword v%d, v%d, s[%d:%d], s%d offen%s" % (Oa, vW1, rO, rO + 3, sT2, self.ost))
        if 'stamp' in self.abl:
            e("s_waitcnt vmcnt(0)")
            stamp()
            e("s_mov_b32 s%d, s%d" % (60 + 2 * 7, sCnt))
            self.nst = 8
            stamp_store()
        if 'ampl' in self.abl:
            e("s_waitcnt vmcnt(0)")
            e("s_memrealtime s[62:63]")
            e("s_waitcnt lgkmcnt(0)")
            e("s_sub_u32 s64, s62, s60")
            e("s_max_u32 s64, s64, 3400")
            e("s_sub_u32 s64, s64, 3400")
            e("s_min_u32 s64, s64, 5000")
            e("s_lshl_b32 s64, s64, 3")
            self.label("L_amp")
            e("s_memrealtime s[66:67]")
            e("s_waitcnt lgkmcnt(0)")
            e("s_sub_u32 s65, s66, s62")
            e("s_cmp_lt_u32 s65, s64")
            e("s_cbranch_scc1 L_amp")
        self.label("L_end")
        e("s_endpgm")

    def text(self):
        self.build()
        hdr = open("standalone__gqa_softmax__sampling.s.ref").read().split("; @launch")[0]
        out = hdr
        out += "; @launch grid=(256,1,1) block=(256,1,1) lds=%d\n" % (self.lds_bytes)
        out += "; ---------------------------------------------------------------------------------------------\n;  loads   : nt, paced with counted vmcnt (5 KiB in flight per wave, 8 KiB for the last 30 %).\n; ---------------------------------------------------------------------------------------------\n"
        out += '.amdgcn_target "amdgcn-amd-amdhsa--gfx950"\n.text\n'
        k = self.name + "_kernel"
        out += ".globl %s\n.p2align 8\n.type %s,@function\n%s:\n" % (k, k, k)
        out += "\n".join(self.lines) + "\n"
        acc = (self.nvgpr + 3) // 4 * 4
        out += """.section .rodata,"a"
.p2align 6
.amdhsa_kernel %s
  .amdhsa_next_free_vgpr %d
  .amdhsa_next_free_sgpr %d
  .amdhsa_accum_offset %d
  .amdhsa_group_segment_fixed_size 0
  .amdhsa_kernarg_size 48
  .amdhsa_user_sgpr_count 2
  .amdhsa_user_sgpr_kernarg_segment_ptr 1
  .amdhsa_system_sgpr_workgroup_id_x 1
.end_amdhsa_kernel
""" % (k, self.nvgpr, 80 if ("stamp" in self.abl or "ampl" in self.abl) else 56, acc)
        return out

if __name__ == "__main__":
    ap = argparse.ArgumentParser()
    ap.add_argument("--w1", type=int, default=5)
    ap.add_argument("--w2", type=int, default=8)
    ap.add_argument("--w0", type=int, default=None)
    ap.add_argument("--frac", type=float, default=0.7)
    ap.add_argument("--ns", type=int, default=24)
    ap.add_argument("--abl", default="")
    ap.add_argument("--tick", type=float, default=0.96)
    ap.add_argument("--role", type=float, default=0.99)
    ap.add_argument("--pg", type=int, default=1)
    ap.add_argument("--pf", type=int, default=0)
    ap.add_argument("--mix", type=int, default=0)
    ap.add_argument("--ost", default=" sc1")
    ap.add_argument("--ldspad", type=int, default=0)
    ap.add_argument("--w3", type=int, default=0)
    ap.add_argument("--xr", type=int, default=0)
    ap.add_argument("--pat", default="w0,w1,t4,t0,t1,t2,t3,s0,s1")
    ap.add_argument("--xors", default="w0>14,s0>12,s1>13")
    ap.add_argument("--M", default="s0,s1,p0,p1,p2,p3,p4,p5")
    ap.add_argument("--frac3", type=float, default=1.0)
    ap.add_argument("-o", default="standalone__gqa_softmax__sampling.s")
    a = ap.parse_args()
    g = Gen(W1=a.w1, W2=a.w2, frac=a.frac, NS=a.ns, abl=a.abl, tick=a.tick, role=a.role, W0=a.w0, per_gap=a.pg, pf=a.pf, mix=a.mix, ost=a.ost, ldspad=a.ldspad, W3=a.w3, frac3=a.frac3, xr=a.xr, pat=a.pat, xors=a.xors, M=a.M)
    open(a.o, "w").write(g.text())
    print("vgprs", g.nvgpr, "lds", g.lds_bytes, "lines", len(g.lines))
```

```python
import struct, sys, math, argparse

def f32hex(x):
    return "0x%08x" % struct.unpack("<I", struct.pack("<f", x))[0]

class Gen:
    def __init__(self, W1=5, W2=8, frac=0.7, NS=24, ld=" nt", abl="", tick=0.86, role=0.93, W0=None, per_gap=1, pf=0, mix=0, ost=' sc1', ldspad=0, W3=0, frac3=1.0, xr=0, pat='w0,w1,t4,t0,t1,t2,t3,s0,s1', xors='w0>14,s0>12,s1>13', M='s0,s1,p0,p1,p2,p3,p4,p5', masks='',
                 name="standalone__gqa_softmax__sampling"):
        self.W1, self.W2, self.frac, self.NS = W1, W2, frac, NS
        self.W0 = W0
        self.ld, self.abl, self.name = ld, abl, name
        self.tick, self.role = tick, role
        self.per_gap = per_gap
        self.pf = pf
        self.mix = mix
        self.ost = ost
        self.ldspad = ldspad
        self.W3, self.frac3 = W3, frac3
        self.xr = xr
        self.pat = pat.split(',')
        self.M = M.split(',')
        self.masks = dict((kv.split('=')[0], int(kv.split('=')[1], 16)) for kv in masks.split(',') if kv)
        self.xors = [x for x in xors.split(',') if x]
        self.lines = []
        self.vm = []

    def e(self, s): self.lines.append("    " + s)
    def label(self, s): self.lines.append(s + ":")
    def c(self, s): self.lines.append("    ; " + s)
    def vmem(self, text, tag):
        self.e(text); self.vm.append(tag)
    def outstanding_after(self, tag):
        return len(self.vm) - 1 - self.vm.index(tag)
    def wait_vm(self, tag):
        n = self.outstanding_after(tag)
        assert n <= 63
        if self.known >= self.vm.index(tag):
            return
        self.e("s_waitcnt vmcnt(%d)" % n)
        self.known = self.vm.index(tag)
    def wait_cnt(self, n):
        idx = len(self.vm) - 1 - n
        if idx >= 0 and self.known < idx:
            self.e("s_waitcnt vmcnt(%d)" % n)
            self.known = idx
    def landed(self, tag):
        return tag in self.vm and self.vm.index(tag) <= self.known

    def build(self):
        NW = 4
        KPW = 512
        NL = KPW // 4
        NQ = KPW // 16
        NU = KPW // 32
        NS = self.NS
        self.known = -1
        e = self.e
        vKoff, vVoff, vLane = 1, 2, 3
        vQ = 4
        vACC = 8
        vACCL = 40
        vA = 44
        vF = 48
        vM, vW0, vW1, vT = 56, 57, 58, 59
        vNM = 60
        vP0, vP1 = 61, 62
        vZ = 64
        vRem = 68
        vRemO = 80
        vOa, vMa = 86, 87
        vS = 88
        vWIN = 120
        nvgpr = vWIN + 4 * NS
        assert nvgpr <= 256
        self.nvgpr = nvgpr
        slot = lambda x: vWIN + 4 * (x % NS)
        rK, rV, rQ, rW, rO = 16, 20, 24, 28, 32
        sOffK, sOffV = 36, 37
        sC, sLO, sHI = 38, 39, 40
        sT0, sT1, sT2 = 41, 42, 43
        sWave, sTick, sRole = 44, 45, 46
        sRemOff = 47
        sUse = 50
        sOwn = 53
        sCnt = 54
        sD = 12
        LDS_ROLE = 0
        LDS_CNT = 4
        LDS_M = 64
        LDS_O = 128
        OSTR = 2064
        self.lds_bytes = max(LDS_O + NW * OSTR, self.ldspad)
        cval = math.log2(math.e) / math.sqrt(128.0)
        WSZ = 0x100000 if 'stamp' not in self.abl else 0x200000
        OOB = 0x7000000

        self.nst = 0
        def stamp():
            if 'stamp' in self.abl:
                e("s_memrealtime s[%d:%d]" % (60 + 2 * self.nst, 61 + 2 * self.nst))
                self.nst += 1
        def stamp_store():
            if 'stamp' in self.abl:
                e("s_waitcnt lgkmcnt(0)")
                e("s_mov_b64 exec, 1")
                for i in range(8):
                    e("v_mov_b32 v%d, s%d" % (16 + i, 60 + 2 * i if i < self.nst else 60))
                e("s_lshl_b32 s%d, s2, 7" % sT0)
                e("s_lshl_b32 s%d, s%d, 5" % (sT1, sWave))
                e("s_add_u32 s%d, s%d, s%d" % (sT0, sT0, sT1))
                e("s_add_u32 s%d, s%d, 0x100000" % (sT0, sT0))
                e("v_mov_b32 v24, 0")
                e("buffer_store_dwordx4 v[16:19], v24, s[%d:%d], s%d offen" % (rW, rW + 3, sT0))
                e("buffer_store_dwordx4 v[20:23], v24, s[%d:%d], s%d offen offset:16" % (rW, rW + 3, sT0))
                e("s_mov_b64 exec, -1")

        stamp()
        if 'ampl' in self.abl:
            e("s_memrealtime s[60:61]")
        e("s_load_dwordx4 s[4:7], s[0:1], 0")
        e("s_load_dwordx4 s[8:11], s[0:1], 16")
        e("s_load_dwordx4 s[12:15], s[0:1], 32")
        e("s_cmp_ge_u32 s2, 256")
        e("s_cbranch_scc1 L_end")
        order = ['s0', 's1', 'p0', 'p1', 'p2', 'p3', 'p4', 'p5']
        assert sorted(self.M) == sorted(order)
        if self.M != order:
            keep = sum(1 << i for i, tok in enumerate(self.M) if order[i] == tok)
            e("s_and_b32 s3, s2, 0x%x" % keep)
            for i, tok in enumerate(self.M):
                if order[i] != tok:
                    e("s_bitcmp1_b32 s2, %d" % i)
                    e("s_cselect_b32 s%d, 0x%x, 0" % (sT0, 1 << order.index(tok)))
                    e("s_or_b32 s3, s3, s%d" % sT0)
            e("s_mov_b32 s2, s3")
        e("v_and_b32 v%d, 63, v0" % vLane)
        e("v_lshrrev_b32 v%d, 6, v0" % vT)
        e("v_and_b32 v%d, 3, v0" % vW1)
        e("v_bfe_u32 v%d, v0, 2, 2" % vW0)
        e("v_bfe_u32 v%d, v0, 4, 2" % vNM)
        e("v_lshlrev_b32 v%d, 6, v%d" % (vNM, vNM))
        e("v_readfirstlane_b32 s%d, v%d" % (sWave, vT))
        e("v_lshl_add_u32 v%d, v%d, 4, v%d" % (vKoff, vW1, vNM))
        e("v_lshl_add_u32 v%d, v%d, 8, v%d" % (vKoff, vW0, vKoff))
        e("v_lshl_add_u32 v%d, v%d, 8, v%d" % (vM, vW1, vNM))
        e("v_lshl_add_u32 v%d, v%d, 4, v%d" % (vM, vW0, vM))
        e("v_lshlrev_b32 v%d, 4, v%d" % (vVoff, vLane))
        pos = {tok: 12 + i for i, tok in enumerate(self.pat)}
        contrib = {"w0": 1 << pos["w0"], "w1": 1 << pos["w1"], "s0": 1 << pos["s0"], "s1": 1 << pos["s1"]}
        for x_ in self.xors:
            a_, b_ = x_.split(">")
            contrib[a_] ^= 1 << int(b_)
        tb = [1 << pos["t%d" % i] for i in range(5)]
        if self.masks:
            contrib = {k_: self.masks[k_] for k_ in ("w0", "w1", "s0", "s1")}
            tb = [self.masks["t%d" % i] for i in range(5)]
        sBase = 55
        e("s_lshr_b32 s%d, s2, 2" % sBase)
        e("s_lshl_b32 s%d, s%d, 21" % (sBase, sBase))
        for tok, src, b_ in (("s0", 2, 0), ("s1", 2, 1), ("w0", sWave, 0), ("w1", sWave, 1)):
            e("s_bitcmp1_b32 s%d, %d" % (src, b_))
            e("s_cselect_b32 s%d, 0x%x, 0" % (sT0, contrib[tok]))
            e("s_xor_b32 s%d, s%d, s%d" % (sBase, sBase, sT0))
        def tmask(t_):
            v_ = 0
            for i in range(5):
                if (t_ >> i) & 1:
                    v_ ^= tb[i]
            return v_
        seen = set()
        for w_ in range(4):
            for s_ in range(4):
                for t_ in range(32):
                    a_ = tmask(t_)
                    for tok, bit in (("w0", w_ & 1), ("w1", w_ >> 1), ("s0", s_ & 1), ("s1", s_ >> 1)):
                        if bit:
                            a_ ^= contrib[tok]
                    seen.add(a_)
        assert len(seen) == 512 and max(seen) < (1 << 21) and min(x_ & 0xfff for x_ in seen) == 0
        e("s_lshr_b32 s%d, s2, 2" % sT1)
        e("s_lshl_b32 s%d, s%d, 10" % (sT2, sT1))
        e("s_mov_b32 s%d, 0x8000000" % (rK + 2))
        e("s_mov_b32 s%d, 0x20000" % (rK + 3))
        e("s_mov_b32 s%d, 0x10000" % (rQ + 2))
        e("s_mov_b32 s%d, 0x20000" % (rQ + 3))
        e("s_waitcnt lgkmcnt(0)")
        e("s_mov_b32 s%d, s6" % rK)
        e("s_and_b32 s%d, s7, 0xffff" % (rK + 1))
        e("s_mov_b32 s%d, s4" % rQ)
        e("s_and_b32 s%d, s5, 0xffff" % (rQ + 1))
        gstride = 4096 * NW
        st = {"k": 0, "v": 0}
        def issue(x):
            r = slot(x)
            if x < NL:
                grp, j = divmod(x, 4)
                if j == 0 and grp:
                    e("s_xor_b32 s%d, s%d, 0x%x" % (sOffK, sBase, tmask(grp)))
                so = sOffK if grp else sBase
                self.vmem("buffer_load_dwordx4 v[%d:%d], v%d, s[%d:%d], s%d offen offset:%d%s" %
                          (r, r + 3, vKoff, rK, rK + 3, so, j * 1024, self.ld), ("ld", x))
            else:
                grp, j = divmod(x - NL, 4)
                if j == 0 and grp:
                    e("s_xor_b32 s%d, s%d, 0x%x" % (sOffV, sBase, tmask(grp)))
                so = sOffV if grp else sBase
                self.vmem("buffer_load_dwordx4 v[%d:%d], v%d, s[%d:%d], s%d offen offset:%d%s" %
                          (r, r + 3, vVoff, rV, rV + 3, so, j * 1024, self.ld), ("ld", x))
        def window(x):
            if self.W0 is not None and x < self.W0:
                return self.W0
            if x < self.frac * 2 * NL:
                return self.W1 + (1 if (self.mix and x > 8 and x % self.mix == 0) else 0)
            if self.W3 and x >= self.frac3 * 2 * NL:
                return self.W3
            return self.W2

        bundles = []
        D = vACC
        def mkA(q):
            def f():
                for j in range(4):
                    r = slot(4 * q + j)
                    e("v_mfma_f32_16x16x32_bf16 v[%d:%d], v[%d:%d], v[%d:%d], 0" %
                      (D + 4 * j, D + 4 * j + 3, r, r + 3, vQ, vQ + 3))
                e("s_nop 4")
            return f
        def mkB(q):
            def f():
                d = lambda j, r: D + 4 * j + r
                rot = "row_ror:12"
                e("s_nop 2")
                for (w, j0) in ((vW0, 0), (vW1, 2)):
                    e("v_add_f32_dpp v%d, v%d, v%d %s row_mask:0xf bank_mask:0x1" % (w, d(j0, 1), d(j0, 0), rot))
                    e("v_add_f32_dpp v%d, v%d, v%d %s row_mask:0xf bank_mask:0x4" % (w, d(j0, 3), d(j0, 2), rot))
                    e("v_add_f32_dpp v%d, v%d, v%d %s row_mask:0xf bank_mask:0x2" % (w, d(j0 + 1, 2), d(j0 + 1, 1), rot))
                    e("v_add_f32_dpp v%d, v%d, v%d %s row_mask:0xf bank_mask:0x8" % (w, d(j0 + 1, 0), d(j0 + 1, 3), rot))
                e("v_add_f32_dpp v%d, v%d, v%d row_ror:8 row_mask:0xf bank_mask:0x3" % (vS + q, vW0, vW0))
                e("s_nop 0")
                e("v_add_f32_dpp v%d, v%d, v%d row_ror:8 row_mask:0xf bank_mask:0xc" % (vS + q, vW1, vW1))
                if q == 0:
                    e("v_mov_b32 v%d, v%d" % (vM, vS))
                else:
                    e("v_max_f32 v%d, v%d, v%d" % (vM, vM, vS + q))
            return f
        def xlane_max(v, t):
            e("s_nop 1")
            e("v_max_f32_dpp v%d, v%d, v%d row_ror:4 row_mask:0xf bank_mask:0xf" % (v, v, v))
            e("s_nop 1")
            e("v_max_f32_dpp v%d, v%d, v%d row_ror:8 row_mask:0xf bank_mask:0xf" % (v, v, v))
            e("v_mov_b32 v%d, v%d" % (t, v))
            e("s_nop 1")
            e("v_permlane16_swap_b32 v%d, v%d" % (v, t))
            e("v_max_f32 v%d, v%d, v%d" % (v, v, t))
            e("v_mov_b32 v%d, v%d" % (t, v))
            e("s_nop 1")
            e("v_permlane32_swap_b32 v%d, v%d" % (v, t))
            e("v_max_f32 v%d, v%d, v%d" % (v, v, t))
        def trans():
            assert self.landed(("clr", 3))
            stamp()
            xlane_max(vM, vW0)
            e("v_and_b32 v%d, 15, v%d" % (vW1, vLane))
            e("v_lshlrev_b32 v%d, 2, v%d" % (vW1, vW1))
            e("s_lshl_b32 s%d, s%d, 4" % (sT0, sWave))
            e("v_add_u32 v%d, s%d, v%d" % (vW0, sT0, vW1))
            e("v_mov_b32 v%d, 1" % vT)
            e("s_mov_b64 exec, 0xf")
            e("ds_write_b32 v%d, v%d offset:%d" % (vW0, vM, LDS_M))
            e("s_mov_b64 exec, 1")
            e("ds_add_u32 v%d, v%d offset:%d" % (vZ, vT, LDS_CNT))
            e("s_mov_b64 exec, -1")
            for r in range(4):
                e("v_mov_b32 v%d, 0x3f803f80" % (vQ + r))
        def trans2():
            self.label("L_wmax")
            e("ds_read_b32 v%d, v%d offset:%d" % (vT, vZ, LDS_CNT))
            e("ds_read_b32 v%d, v%d offset:%d" % (vM, vW1, LDS_M))
            e("s_waitcnt lgkmcnt(0)")
            e("v_readfirstlane_b32 s%d, v%d" % (sT0, vT))
            e("s_cmp_lg_u32 s%d, 4" % sT0)
            e("s_cbranch_scc1 L_wmax")
            e("v_max_f32_dpp v%d, v%d, v%d row_ror:4 row_mask:0xf bank_mask:0xf" % (vM, vM, vM))
            e("s_nop 1")
            e("v_max_f32_dpp v%d, v%d, v%d row_ror:8 row_mask:0xf bank_mask:0xf" % (vM, vM, vM))
            e("v_mul_f32 v%d, s%d, v%d" % (vNM, sC, vM))
        def mkP(u):
            def f():
                e("v_fma_f32 v%d, v%d, s%d, -v%d" % (vP0, vS + 2 * u, sC, vNM))
                e("v_fma_f32 v%d, v%d, s%d, -v%d" % (vP1, vS + 2 * u + 1, sC, vNM))
                e("v_exp_f32 v%d, v%d" % (vP0, vP0))
                e("v_exp_f32 v%d, v%d" % (vP1, vP1))
                e("s_nop 0")
                e("v_cvt_pk_bf16_f32 v%d, v%d, v%d" % (vA, vP0, vP1))
                e("s_nop 1")
                e("v_mov_b32_dpp v%d, v%d row_ror:12 row_mask:0xf bank_mask:0xf" % (vA + 1, vA))
                e("v_mov_b32_dpp v%d, v%d row_ror:8 row_mask:0xf bank_mask:0xf" % (vA + 2, vA))
                e("v_mov_b32_dpp v%d, v%d row_ror:4 row_mask:0xf bank_mask:0xf" % (vA + 3, vA))
                e("s_nop 1")
                cc = "0" if u == 0 else "v[%d:%d]" % (vACCL, vACCL + 3)
                e("v_mfma_f32_16x16x32_bf16 v[%d:%d], v[%d:%d], v[%d:%d], %s" % (vACCL, vACCL + 3, vA, vA + 3, vQ, vQ + 3, cc))
            return f
        def mkC(u, half):
            base = NL + 8 * u
            def perms(i):
                F = vF + 4 * (i & 1)
                sel = sHI if (i & 1) else sLO
                for p in range(4):
                    e("v_perm_b32 v%d, v%d, v%d, s%d" % (F + p, slot(base + p + 4) + (i >> 1), slot(base + p) + (i >> 1), sel))
            def mf(i):
                F = vF + 4 * (i & 1)
                a = vACC + 4 * i
                cc = "0" if u == 0 else "v[%d:%d]" % (a, a + 3)
                e("v_mfma_f32_16x16x32_bf16 v[%d:%d], v[%d:%d], v[%d:%d], %s" % (a, a + 3, vA, vA + 3, F, F + 3, cc))
            def f():
                i0 = 4 * half
                perms(i0); perms(i0 + 1); mf(i0); perms(i0 + 2); mf(i0 + 1); perms(i0 + 3); mf(i0 + 2)
                e("s_nop 0")
                mf(i0 + 3)
            return f
        for q in range(NQ):
            bundles.append(("A%d" % q, ("ld", 4 * q + 3), list(range(4 * q, 4 * q + 4)), mkA(q)))
            bundles.append(("B%d" % q, None, [], mkB(q)))
        bundles.append(("T", None, [], trans))
        bundles.append(("T2", ("ld", NL + 12), [], trans2))
        for u in range(NU):
            bundles.append(("P%d" % u, None, [], mkP(u)))
            bundles.append(("C%d_0" % u, ("ld", NL + 8 * u + 7), [], mkC(u, 0)))
            bundles.append(("C%d_1" % u, None, list(range(NL + 8 * u, NL + 8 * u + 8)), mkC(u, 1)))

        def ev_setup():
            e("s_mov_b32 s%d, s8" % rV)
            e("s_and_b32 s%d, s9, 0xffff" % (rV + 1))
            e("s_mov_b32 s%d, 0x8000000" % (rV + 2))
            e("s_mov_b32 s%d, 0x20000" % (rV + 3))
            e("s_mov_b32 s%d, %s" % (sC, f32hex(cval)))
            e("s_mov_b32 s%d, 0x05040100" % sLO)
            e("s_mov_b32 s%d, 0x07060302" % sHI)
            e("s_mov_b32 s%d, s14" % rW)
            e("s_and_b32 s%d, s15, 0xffff" % (rW + 1))
            e("s_mov_b32 s%d, 0x%x" % (rW + 2, WSZ))
            e("s_mov_b32 s%d, 0x20000" % (rW + 3))
            e("s_mov_b32 s%d, s10" % rO)
            e("s_and_b32 s%d, s11, 0xffff" % (rO + 1))
            e("s_mov_b32 s%d, 0x10000" % (rO + 2))
            e("s_mov_b32 s%d, 0x20000" % (rO + 3))
            e("s_lshl_b32 s%d, s%d, 2" % (sT1, sT1))
            e("s_add_u32 s12, s12, s%d" % sT1)
            e("s_addc_u32 s13, s13, 0")
            e("s_lshl_b32 s%d, s%d, 10" % (sT0, sWave))
            e("s_lshl_b32 s%d, s2, 12" % sOwn)
            e("s_add_u32 s%d, s%d, s%d" % (sOwn, sOwn, sT0))
            for k in range(1, 4):
                e("s_xor_b32 s%d, s%d, %d" % (sRemOff + k - 1, sOwn, k << 12))
            e("v_and_b32 v%d, 3, v0" % vOa)
            e("v_lshlrev_b32 v%d, 9, v%d" % (vOa, vOa))
            e("v_bfe_u32 v%d, v0, 2, 4" % vMa)
            e("v_lshl_add_u32 v%d, v%d, 4, v%d" % (vOa, vMa, vOa))
            e("s_lshl_b32 s%d, s%d, 2" % (sT0, sWave))
            e("v_add_u32 v%d, s%d, v%d" % (vOa, sT0, vOa))
            e("v_mov_b32 v%d, s%d" % (vMa, sT0))
            e("s_lshl_b32 s%d, s%d, 8" % (sT0, sWave))
            e("s_add_u32 s%d, s%d, s%d" % (sT2, sT2, sT0))
            for r in range(4):
                e("v_mov_b32 v%d, 0" % (vZ + r))
            if 'noclr' in self.abl:
                e("s_mov_b32 s%d, 0x%x" % (sT0, OOB))
            else:
                e("s_mov_b32 s%d, s%d" % (sT0, sOwn))
            self.vmem("buffer_store_dwordx4 v[%d:%d], v%d, s[%d:%d], s%d offen sc1" %
                      (vZ, vZ + 3, vVoff, rW, rW + 3, sT0), ("clr", 3))
            e("ds_write_b64 v%d, v[%d:%d] offset:%d" % (vZ, vZ, vZ + 1, LDS_ROLE))
            e("s_waitcnt lgkmcnt(0)")
            e("s_barrier")
        def ev_ticket():
            if 'notick' in self.abl:
                e('s_mov_b32 s%d, 0' % sTick)
                return
            assert self.landed(("clr", 3))
            e("s_cmp_lg_u32 s%d, 0" % sWave)
            e("s_cbranch_scc1 L_notick")
            e("s_mov_b32 s%d, 1" % sTick)
            e("s_atomic_add s%d, s[12:13], 0 glc" % sTick)
            self.label("L_notick")
        def ev_role():
            e("s_cmp_lg_u32 s%d, 0" % sWave)
            e("s_cbranch_scc1 L_norole")
            e("s_waitcnt lgkmcnt(0)")
            e("s_add_u32 s%d, s%d, 1" % (sTick, sTick))
            e("v_mov_b32 v%d, s%d" % (vT, sTick))
            e("ds_write_b32 v%d, v%d offset:%d" % (vZ, vT, LDS_ROLE))
            self.label("L_norole")
        def rem_load(k, so, track=True):
            t2 = "buffer_load_dwordx4 v[%d:%d], v%d, s[%d:%d], s%d offen sc1" % (vRem + 4 * k, vRem + 4 * k + 3, vVoff, rW, rW + 3, so)
            if track:
                self.vmem(t2, ("rem", k, len(self.vm)))
            else:
                e(t2)
        def rem_loads():
            for k in range(3):
                rem_load(k, sUse + k)
        def ev_prefetch_a():
            e("ds_read_b32 v%d, v%d offset:%d" % (vT, vZ, LDS_ROLE))
        def ev_prefetch_b():
            e("s_waitcnt lgkmcnt(0)")
            e("v_readfirstlane_b32 s%d, v%d" % (sRole, vT))
            e("s_cmp_eq_u32 s%d, 4" % sRole)
            for k in range(3):
                e("s_cselect_b32 s%d, s%d, 0x%x" % (sUse + k, sRemOff + k, OOB))
            rem_loads()
        TOT = 2 * NL
        events = {int(self.tick * TOT): ev_ticket, int(self.role * TOT): ev_role}

        self.vmem("buffer_load_dwordx4 v[%d:%d], v%d, s[%d:%d], s%d offen" % (vQ, vQ + 3, vM, rQ, rQ + 3, sT2), "q")
        freed = set()
        bi = 0
        def emit_bundle(force):
            nonlocal bi
            name, need, frees, fn = bundles[bi]
            if need is not None and not self.landed(need):
                if not force:
                    return False
                self.wait_vm(need)
            self.c(name)
            if not ('nocomp' in self.abl and name[0] != 'T'):
                fn()
            freed.update(frees)
            bi += 1
            return True
        first = window(0)
        for x in range(TOT):
            while x >= NS and (x - NS) not in freed:
                emit_bundle(True)
            w = window(x)
            if x - w >= 0:
                self.wait_vm(("ld", x - w))
                if x - w == 3:
                    stamp()
            issue(x)
            if x == first - 1:
                ev_setup()
            if x in events:
                events[x]()
            n = 0
            while bi < len(bundles) and n < self.per_gap and emit_bundle(False):
                n += 1
        while bi < len(bundles):
            if bi == len(bundles) - 2:
                self.wait_vm(bundles[bi][1])
                ev_prefetch_a()
            emit_bundle(True)
            if bi == len(bundles) - self.pf:
                ev_prefetch_b()
        stamp()
        if 'noepi' in self.abl:
            e('s_waitcnt vmcnt(0)')
            e('s_endpgm')
        e("s_mul_i32 s%d, s%d, %d" % (sT0, sWave, OSTR))
        e("v_add_u32 v%d, s%d, v%d" % (vW0, sT0, vVoff))
        X = 44
        e("v_readlane_b32 s%d, v%d, s%d" % (sT1, vNM, sWave))
        e("s_mov_b64 exec, 1")
        e("ds_write_b128 v%d, v[%d:%d] offset:%d" % (vW0, vACCL, vACCL + 3, LDS_O + 2048))
        e("s_mov_b64 exec, 0xffff")
        for i in range(8):
            if i == 4:
                e("s_nop 1")
            e("ds_write_b128 v%d, v[%d:%d] offset:%d" % (vW0, vACC + 4 * i, vACC + 4 * i + 3, LDS_O + i * 256))
        e("s_mov_b64 exec, -1")
        e("v_mov_b32 v%d, s%d" % (X + 2, sT1))
        e("v_lshlrev_b32 v%d, 2, v%d" % (vW1, vLane))
        e("s_waitcnt lgkmcnt(0)")
        e("s_barrier")
        stamp()
        R = vS
        ll = lambda w: R + w
        oo = lambda w: R + 8 + 2 * w
        for w in range(4):
            for h in range(2):
                e("ds_read_b32 v%d, v%d offset:%d" % (oo(w) + h, vOa, LDS_O + w * OSTR + 256 * h))
        for w in range(4):
            e("ds_read_b32 v%d, v%d offset:%d" % (ll(w), vMa, LDS_O + w * OSTR + 2048))
        e("ds_read_b32 v%d, v%d offset:%d" % (vT, vZ, LDS_ROLE))
        e("s_waitcnt lgkmcnt(5)")
        for h in range(2):
            e("v_add_f32 v%d, v%d, v%d" % (X + h, oo(0) + h, oo(1) + h))
            e("v_add_f32 v%d, v%d, v%d" % (oo(2) + h, oo(2) + h, oo(3) + h))
        for h in range(2):
            e("v_add_f32 v%d, v%d, v%d" % (X + h, X + h, oo(2) + h))
        e("s_waitcnt lgkmcnt(0)")
        e("v_readfirstlane_b32 s%d, v%d" % (sRole, vT))
        e("v_add_f32 v%d, v%d, v%d" % (X + 3, ll(0), ll(1)))
        e("v_add_f32 v%d, v%d, v%d" % (ll(2), ll(2), ll(3)))
        e("v_add_f32 v%d, v%d, v%d" % (X + 3, X + 3, ll(2)))
        if 'nopub' in self.abl:
            e('s_endpgm')
        for r in range(4):
            e("v_or_b32 v%d, 1, v%d" % (X + r, X + r))
        e("s_cmp_eq_u32 s%d, 4" % sRole)
        e("s_cbranch_scc1 L_comb")
        e("buffer_store_dwordx4 v[%d:%d], v%d, s[%d:%d], s%d offen sc1" % (X, X + 3, vVoff, rW, rW + 3, sOwn))
        if 'stamp' in self.abl:
            sv = self.nst
            stamp(); stamp()
            stamp_store()
            self.nst = sv
        e("s_endpgm")
        self.label("L_comb")
        e("s_mov_b32 s%d, 0" % sCnt)
        T3 = 16
        self.label("L_chk")
        e("s_waitcnt vmcnt(0)")
        for k in range(3):
            e("v_and_b32 v%d, v%d, v%d" % (T3 + k, vRem + 4 * k, vRem + 4 * k + 1))
        for r in range(2, 4):
            for k in range(3):
                e("v_and_b32 v%d, v%d, v%d" % (T3 + k, T3 + k, vRem + 4 * k + r))
        e("v_and_b32 v%d, v%d, v%d" % (vT, T3, T3 + 1))
        e("v_and_b32 v%d, v%d, v%d" % (vT, vT, T3 + 2))
        e("v_and_b32 v%d, 1, v%d" % (vT, vT))
        e("v_cmp_ne_u32 vcc, 1, v%d" % vT)
        e("s_cbranch_vccz L_ok")
        if 'nopoll' in self.abl:
            e("s_branch L_ok")
        e("s_add_u32 s%d, s%d, 1" % (sCnt, sCnt))
        e("s_cmp_gt_u32 s%d, 0x100000" % sCnt)
        e("s_cbranch_scc1 L_ok")
        for k in range(3):
            e("v_and_b32 v%d, 1, v%d" % (vT, T3 + k))
            e("v_cmp_ne_u32 vcc, 1, v%d" % vT)
            e("s_cbranch_vccz L_skip%d" % k)
            rem_load(k, sRemOff + k, track=False)
            self.label("L_skip%d" % k)
        e("s_branch L_chk")
        self.label("L_ok")
        stamp()
        Rs = [X] + [vRem + 4 * k for k in range(3)]
        Mx, Ls, Oa = 16, 18, 20
        e("v_max3_f32 v%d, v%d, v%d, v%d" % (Mx, Rs[0] + 2, Rs[1] + 2, Rs[2] + 2))
        e("v_max_f32 v%d, v%d, v%d" % (Mx, Mx, Rs[3] + 2))
        for k in range(4):
            e("v_sub_f32 v%d, v%d, v%d" % (Rs[k] + 2, Rs[k] + 2, Mx))
        for k in range(4):
            e("v_exp_f32 v%d, v%d" % (Rs[k] + 2, Rs[k] + 2))
        for k in range(4):
            e("v_mul_f32 v%d, v%d, v%d" % (Rs[k] + 3, Rs[k] + 2, Rs[k] + 3))
        for k in range(4):
            for h in range(2):
                e("v_mul_f32 v%d, v%d, v%d" % (Rs[k] + h, Rs[k] + 2, Rs[k] + h))
        e("v_add_f32 v%d, v%d, v%d" % (Ls, Rs[0] + 3, Rs[1] + 3))
        e("v_add_f32 v%d, v%d, v%d" % (Ls + 1, Rs[2] + 3, Rs[3] + 3))
        e("v_add_f32 v%d, v%d, v%d" % (Ls, Ls, Ls + 1))
        e("v_rcp_f32 v%d, v%d" % (Ls, Ls))
        for h in range(2):
            e("v_add_f32 v%d, v%d, v%d" % (Oa + h, Rs[0] + h, Rs[1] + h))
            e("v_add_f32 v%d, v%d, v%d" % (Rs[2] + h, Rs[2] + h, Rs[3] + h))
        for h in range(2):
            e("v_add_f32 v%d, v%d, v%d" % (Oa + h, Oa + h, Rs[2] + h))
        for h in range(2):
            e("v_mul_f32 v%d, v%d, v%d" % (Oa + h, Oa + h, Ls))
        e("v_cvt_pk_bf16_f32 v%d, v%d, v%d" % (Oa, Oa, Oa + 1))
        if 'noout' not in self.abl:
            e("buffer_store_dword v%d, v%d, s[%d:%d], s%d offen%s" % (Oa, vW1, rO, rO + 3, sT2, self.ost))
        if 'stamp' in self.abl:
            e("s_waitcnt vmcnt(0)")
            stamp()
            e("s_mov_b32 s%d, s%d" % (60 + 2 * 7, sCnt))
            self.nst = 8
            stamp_store()
        if 'ampl' in self.abl:
            e("s_waitcnt vmcnt(0)")
            e("s_memrealtime s[62:63]")
            e("s_waitcnt lgkmcnt(0)")
            e("s_sub_u32 s64, s62, s60")
            e("s_max_u32 s64, s64, 3400")
            e("s_sub_u32 s64, s64, 3400")
            e("s_min_u32 s64, s64, 5000")
            e("s_lshl_b32 s64, s64, 3")
            self.label("L_amp")
            e("s_memrealtime s[66:67]")
            e("s_waitcnt lgkmcnt(0)")
            e("s_sub_u32 s65, s66, s62")
            e("s_cmp_lt_u32 s65, s64")
            e("s_cbranch_scc1 L_amp")
        self.label("L_end")
        e("s_endpgm")

    def text(self):
        self.build()
        hdr = open("standalone__gqa_softmax__sampling.s.ref").read().split("; @launch")[0]
        out = hdr
        out += "; @launch grid=(256,1,1) block=(256,1,1) lds=%d\n" % (self.lds_bytes)
        out += "; ---------------------------------------------------------------------------------------------\n;  loads   : nt, paced with counted vmcnt (5 KiB in flight per wave, 8 KiB for the last 30 %).\n; ---------------------------------------------------------------------------------------------\n"
        out += '.amdgcn_target "amdgcn-amd-amdhsa--gfx950"\n.text\n'
        k = self.name + "_kernel"
        out += ".globl %s\n.p2align 8\n.type %s,@function\n%s:\n" % (k, k, k)
        out += "\n".join(self.lines) + "\n"
        acc = (self.nvgpr + 3) // 4 * 4
        out += """.section .rodata,"a"
.p2align 6
.amdhsa_kernel %s
  .amdhsa_next_free_vgpr %d
  .amdhsa_next_free_sgpr %d
  .amdhsa_accum_offset %d
  .amdhsa_group_segment_fixed_size 0
  .amdhsa_kernarg_size 48
  .amdhsa_user_sgpr_count 2
  .amdhsa_user_sgpr_kernarg_segment_ptr 1
  .amdhsa_system_sgpr_workgroup_id_x 1
.end_amdhsa_kernel
""" % (k, self.nvgpr, 80 if ("stamp" in self.abl or "ampl" in self.abl) else 56, acc)
        return out

if __name__ == "__main__":
    ap = argparse.ArgumentParser()
    ap.add_argument("--w1", type=int, default=5)
    ap.add_argument("--w2", type=int, default=8)
    ap.add_argument("--w0", type=int, default=None)
    ap.add_argument("--frac", type=float, default=0.7)
    ap.add_argument("--ns", type=int, default=24)
    ap.add_argument("--abl", default="")
    ap.add_argument("--tick", type=float, default=0.96)
    ap.add_argument("--role", type=float, default=0.99)
    ap.add_argument("--pg", type=int, default=1)
    ap.add_argument("--pf", type=int, default=0)
    ap.add_argument("--mix", type=int, default=0)
    ap.add_argument("--ost", default=" sc1")
    ap.add_argument("--ldspad", type=int, default=0)
    ap.add_argument("--w3", type=int, default=0)
    ap.add_argument("--xr", type=int, default=0)
    ap.add_argument("--pat", default="w0,w1,t4,t0,t1,t2,t3,s0,s1")
    ap.add_argument("--xors", default="w0>14,s0>12,s1>13")
    ap.add_argument("--M", default="s0,s1,p0,p1,p2,p3,p4,p5")
    ap.add_argument("--masks", default="")
    ap.add_argument("--frac3", type=float, default=1.0)
    ap.add_argument("-o", default="standalone__gqa_softmax__sampling.s")
    a = ap.parse_args()
    g = Gen(W1=a.w1, W2=a.w2, frac=a.frac, NS=a.ns, abl=a.abl, tick=a.tick, role=a.role, W0=a.w0, per_gap=a.pg, pf=a.pf, mix=a.mix, ost=a.ost, ldspad=a.ldspad, W3=a.w3, frac3=a.frac3, xr=a.xr, pat=a.pat, xors=a.xors, M=a.M, masks=a.masks)
    open(a.o, "w").write(g.text())
    print("vgprs", g.nvgpr, "lds", g.lds_bytes, "lines", len(g.lines))
```

```python
import struct, sys, math, argparse

def f32hex(x):
    return "0x%08x" % struct.unpack("<I", struct.pack("<f", x))[0]

class Gen:
    def __init__(self, W1=5, W2=8, frac=0.7, NS=24, ld=" nt", abl="", tick=0.86, role=0.93, W0=None, per_gap=1, pf=0, mix=0, ost=' sc1', ldspad=0, W3=0, frac3=1.0, xr=0, pat='w0,w1,t4,t0,t1,t2,t3,s0,s1', xors='w0>14,s0>12,s1>13', M='s0,s1,p0,p1,p2,p3,p4,p5', masks='',
                 name="standalone__gqa_softmax__sampling"):
        self.W1, self.W2, self.frac, self.NS = W1, W2, frac, NS
        self.W0 = W0
        self.ld, self.abl, self.name = ld, abl, name
        self.tick, self.role = tick, role
        self.per_gap = per_gap
        self.pf = pf
        self.mix = mix
        self.ost = ost
        self.ldspad = ldspad
        self.W3, self.frac3 = W3, frac3
        self.xr = xr
        self.pat = pat.split(',')
        self.M = M.split(',')
        self.masks = dict((kv.split('=')[0], int(kv.split('=')[1], 16)) for kv in masks.split(',') if kv)
        self.xors = [x for x in xors.split(',') if x]
        self.lines = []
        self.vm = []

    def e(self, s): self.lines.append("    " + s)
    def label(self, s): self.lines.append(s + ":")
    def c(self, s): self.lines.append("    ; " + s)
    def vmem(self, text, tag):
        self.e(text); self.vm.append(tag)
    def outstanding_after(self, tag):
        return len(self.vm) - 1 - self.vm.index(tag)
    def wait_vm(self, tag):
        n = self.outstanding_after(tag)
        assert n <= 63
        if self.known >= self.vm.index(tag):
            return
        self.e("s_waitcnt vmcnt(%d)" % n)
        self.known = self.vm.index(tag)
    def wait_cnt(self, n):
        idx = len(self.vm) - 1 - n
        if idx >= 0 and self.known < idx:
            self.e("s_waitcnt vmcnt(%d)" % n)
            self.known = idx
    def landed(self, tag):
        return tag in self.vm and self.vm.index(tag) <= self.known

    def build(self):
        NW = 4
        KPW = 512
        NL = KPW // 4
        NQ = KPW // 16
        NU = KPW // 32
        NS = self.NS
        self.known = -1
        e = self.e
        vKoff, vVoff, vLane = 1, 2, 3
        vQ = 4
        vACC = 8
        vACCL = 40
        vA = 44
        vF = 48
        vM, vW0, vW1, vT = 56, 57, 58, 59
        vNM = 60
        vP0, vP1 = 61, 62
        vZ = 64
        vRem = 68
        vRemO = 80
        vOa, vMa = 86, 87
        vS = 88
        vWIN = 120
        nvgpr = vWIN + 4 * NS
        assert nvgpr <= 256
        self.nvgpr = nvgpr
        slot = lambda x: vWIN + 4 * (x % NS)
        rK, rV, rQ, rW, rO = 16, 20, 24, 28, 32
        sOffK, sOffV = 36, 37
        sC, sLO, sHI = 38, 39, 40
        sT0, sT1, sT2 = 41, 42, 43
        sWave, sTick, sRole = 44, 45, 46
        sRemOff = 47
        sUse = 50
        sOwn = 53
        sCnt = 54
        sD = 12
        LDS_ROLE = 0
        LDS_CNT = 4
        LDS_M = 64
        LDS_O = 128
        OSTR = 2064
        self.lds_bytes = max(LDS_O + NW * OSTR, self.ldspad)
        cval = math.log2(math.e) / math.sqrt(128.0)
        WSZ = 0x100000 if 'stamp' not in self.abl else 0x200000
        OOB = 0x7000000

        self.nst = 0
        def stamp():
            if 'stamp' in self.abl:
                e("s_memrealtime s[%d:%d]" % (60 + 2 * self.nst, 61 + 2 * self.nst))
                self.nst += 1
        def stamp_store():
            if 'stamp' in self.abl:
                e("s_waitcnt lgkmcnt(0)")
                e("s_mov_b64 exec, 1")
                for i in range(8):
                    e("v_mov_b32 v%d, s%d" % (16 + i, 60 + 2 * i if i < self.nst else 60))
                e("s_lshl_b32 s%d, s2, 7" % sT0)
                e("s_lshl_b32 s%d, s%d, 5" % (sT1, sWave))
                e("s_add_u32 s%d, s%d, s%d" % (sT0, sT0, sT1))
                e("s_add_u32 s%d, s%d, 0x100000" % (sT0, sT0))
                e("v_mov_b32 v24, 0")
                e("buffer_store_dwordx4 v[16:19], v24, s[%d:%d], s%d offen" % (rW, rW + 3, sT0))
                e("buffer_store_dwordx4 v[20:23], v24, s[%d:%d], s%d offen offset:16" % (rW, rW + 3, sT0))
                e("s_mov_b64 exec, -1")

        stamp()
        if 'ampl' in self.abl:
            e("s_memrealtime s[60:61]")
        e("s_load_dwordx4 s[4:7], s[0:1], 0")
        e("s_load_dwordx4 s[8:11], s[0:1], 16")
        e("s_load_dwordx4 s[12:15], s[0:1], 32")
        e("s_cmp_ge_u32 s2, 256")
        e("s_cbranch_scc1 L_end")
        order = ['s0', 's1', 'p0', 'p1', 'p2', 'p3', 'p4', 'p5']
        assert sorted(self.M) == sorted(order)
        if self.M != order:
            keep = sum(1 << i for i, tok in enumerate(self.M) if order[i] == tok)
            e("s_and_b32 s3, s2, 0x%x" % keep)
            for i, tok in enumerate(self.M):
                if order[i] != tok:
                    e("s_bitcmp1_b32 s2, %d" % i)
                    e("s_cselect_b32 s%d, 0x%x, 0" % (sT0, 1 << order.index(tok)))
                    e("s_or_b32 s3, s3, s%d" % sT0)
            e("s_mov_b32 s2, s3")
        e("v_and_b32 v%d, 63, v0" % vLane)
        e("v_lshrrev_b32 v%d, 6, v0" % vT)
        e("v_and_b32 v%d, 3, v0" % vW1)
        e("v_bfe_u32 v%d, v0, 2, 2" % vW0)
        e("v_bfe_u32 v%d, v0, 4, 2" % vNM)
        e("v_lshlrev_b32 v%d, 6, v%d" % (vNM, vNM))
        e("v_readfirstlane_b32 s%d, v%d" % (sWave, vT))
        e("v_lshl_add_u32 v%d, v%d, 4, v%d" % (vKoff, vW1, vNM))
        e("v_lshl_add_u32 v%d, v%d, 8, v%d" % (vKoff, vW0, vKoff))
        e("v_lshl_add_u32 v%d, v%d, 8, v%d" % (vM, vW1, vNM))
        e("v_lshl_add_u32 v%d, v%d, 4, v%d" % (vM, vW0, vM))
        e("v_lshlrev_b32 v%d, 4, v%d" % (vVoff, vLane))
        pos = {tok: 12 + i for i, tok in enumerate(self.pat)}
        contrib = {"w0": 1 << pos["w0"], "w1": 1 << pos["w1"], "s0": 1 << pos["s0"], "s1": 1 << pos["s1"]}
        for x_ in self.xors:
            a_, b_ = x_.split(">")
            contrib[a_] ^= 1 << int(b_)
        tb = [1 << pos["t%d" % i] for i in range(5)]
        if self.masks:
            contrib = {k_: self.masks[k_] for k_ in ("w0", "w1", "s0", "s1")}
            tb = [self.masks["t%d" % i] for i in range(5)]
        sBase = 55
        e("s_lshr_b32 s%d, s2, 2" % sBase)
        e("s_lshl_b32 s%d, s%d, 21" % (sBase, sBase))
        for tok, src, b_ in (("s0", 2, 0), ("s1", 2, 1), ("w0", sWave, 0), ("w1", sWave, 1)):
            e("s_bitcmp1_b32 s%d, %d" % (src, b_))
            e("s_cselect_b32 s%d, 0x%x, 0" % (sT0, contrib[tok]))
            e("s_xor_b32 s%d, s%d, s%d" % (sBase, sBase, sT0))
        def tmask(t_):
            v_ = 0
            for i in range(5):
                if (t_ >> i) & 1:
                    v_ ^= tb[i]
            return v_
        seen = set()
        for w_ in range(4):
            for s_ in range(4):
                for t_ in range(32):
                    a_ = tmask(t_)
                    for tok, bit in (("w0", w_ & 1), ("w1", w_ >> 1), ("s0", s_ & 1), ("s1", s_ >> 1)):
                        if bit:
                            a_ ^= contrib[tok]
                    seen.add(a_)
        assert len(seen) == 512 and max(seen) < (1 << 21) and min(x_ & 0xfff for x_ in seen) == 0
        e("s_lshr_b32 s%d, s2, 2" % sT1)
        e("s_lshl_b32 s%d, s%d, 10" % (sT2, sT1))
        e("s_mov_b32 s%d, 0x8000000" % (rK + 2))
        e("s_mov_b32 s%d, 0x20000" % (rK + 3))
        e("s_mov_b32 s%d, 0x10000" % (rQ + 2))
        e("s_mov_b32 s%d, 0x20000" % (rQ + 3))
        e("s_waitcnt lgkmcnt(0)")
        e("s_mov_b32 s%d, s6" % rK)
        e("s_and_b32 s%d, s7, 0xffff" % (rK + 1))
        e("s_mov_b32 s%d, s4" % rQ)
        e("s_and_b32 s%d, s5, 0xffff" % (rQ + 1))
        gstride = 4096 * NW
        st = {"k": 0, "v": 0}
        def issue(x):
            r = slot(x)
            if x < NL:
                grp, j = divmod(x, 4)
                if j == 0 and grp:
                    e("s_xor_b32 s%d, s%d, 0x%x" % (sOffK, sBase, tmask(grp)))
                so = sOffK if grp else sBase
                self.vmem("buffer_load_dwordx4 v[%d:%d], v%d, s[%d:%d], s%d offen offset:%d%s" %
                          (r, r + 3, vKoff, rK, rK + 3, so, j * 1024, self.ld), ("ld", x))
            else:
                grp, j = divmod(x - NL, 4)
                if j == 0 and grp:
                    e("s_xor_b32 s%d, s%d, 0x%x" % (sOffV, sBase, tmask(grp)))
                so = sOffV if grp else sBase
                self.vmem("buffer_load_dwordx4 v[%d:%d], v%d, s[%d:%d], s%d offen offset:%d%s" %
                          (r, r + 3, vVoff, rV, rV + 3, so, j * 1024, self.ld), ("ld", x))
        def window(x):
            if self.W0 is not None and x < self.W0:
                return self.W0
            if x < self.frac * 2 * NL:
                return self.W1 + (1 if (self.mix and x > 8 and x % self.mix == 0) else 0)
            if self.W3 and x >= self.frac3 * 2 * NL:
                return self.W3
            return self.W2

        bundles = []
        D = vACC
        def mkA(q):
            def f():
                for j in range(4):
                    r = slot(4 * q + j)
                    e("v_mfma_f32_16x16x32_bf16 v[%d:%d], v[%d:%d], v[%d:%d], 0" %
                      (D + 4 * j, D + 4 * j + 3, r, r + 3, vQ, vQ + 3))
                e("s_nop 4")
            return f
        def mkB(q):
            def f():
                d = lambda j, r: D + 4 * j + r
                rot = "row_ror:12"
                e("s_nop 2")
                for (w, j0) in ((vW0, 0), (vW1, 2)):
                    e("v_add_f32_dpp v%d, v%d, v%d %s row_mask:0xf bank_mask:0x1" % (w, d(j0, 1), d(j0, 0), rot))
                    e("v_add_f32_dpp v%d, v%d, v%d %s row_mask:0xf bank_mask:0x4" % (w, d(j0, 3), d(j0, 2), rot))
                    e("v_add_f32_dpp v%d, v%d, v%d %s row_mask:0xf bank_mask:0x2" % (w, d(j0 + 1, 2), d(j0 + 1, 1), rot))
                    e("v_add_f32_dpp v%d, v%d, v%d %s row_mask:0xf bank_mask:0x8" % (w, d(j0 + 1, 0), d(j0 + 1, 3), rot))
                e("v_add_f32_dpp v%d, v%d, v%d row_ror:8 row_mask:0xf bank_mask:0x3" % (vS + q, vW0, vW0))
                e("s_nop 0")
                e("v_add_f32_dpp v%d, v%d, v%d row_ror:8 row_mask:0xf bank_mask:0xc" % (vS + q, vW1, vW1))
                if q == 0:
                    e("v_mov_b32 v%d, v%d" % (vM, vS))
                else:
                    e("v_max_f32 v%d, v%d, v%d" % (vM, vM, vS + q))
            return f
        def xlane_max(v, t):
            e("s_nop 1")
            e("v_max_f32_dpp v%d, v%d, v%d row_ror:4 row_mask:0xf bank_mask:0xf" % (v, v, v))
            e("s_nop 1")
            e("v_max_f32_dpp v%d, v%d, v%d row_ror:8 row_mask:0xf bank_mask:0xf" % (v, v, v))
            e("v_mov_b32 v%d, v%d" % (t, v))
            e("s_nop 1")
            e("v_permlane16_swap_b32 v%d, v%d" % (v, t))
            e("v_max_f32 v%d, v%d, v%d" % (v, v, t))
            e("v_mov_b32 v%d, v%d" % (t, v))
            e("s_nop 1")
            e("v_permlane32_swap_b32 v%d, v%d" % (v, t))
            e("v_max_f32 v%d, v%d, v%d" % (v, v, t))
        def trans():
            assert self.landed(("clr", 3))
            stamp()
            xlane_max(vM, vW0)
            e("v_and_b32 v%d, 15, v%d" % (vW1, vLane))
            e("v_lshlrev_b32 v%d, 2, v%d" % (vW1, vW1))
            e("s_lshl_b32 s%d, s%d, 4" % (sT0, sWave))
            e("v_add_u32 v%d, s%d, v%d" % (vW0, sT0, vW1))
            e("v_mov_b32 v%d, 1" % vT)
            e("s_mov_b64 exec, 0xf")
            e("ds_write_b32 v%d, v%d offset:%d" % (vW0, vM, LDS_M))
            e("s_mov_b64 exec, 1")
            e("ds_add_u32 v%d, v%d offset:%d" % (vZ, vT, LDS_CNT))
            e("s_mov_b64 exec, -1")
            for r in range(4):
                e("v_mov_b32 v%d, 0x3f803f80" % (vQ + r))
        def trans2():
            self.label("L_wmax")
            e("ds_read_b32 v%d, v%d offset:%d" % (vT, vZ, LDS_CNT))
            e("ds_read_b32 v%d, v%d offset:%d" % (vM, vW1, LDS_M))
            e("s_waitcnt lgkmcnt(0)")
            e("v_readfirstlane_b32 s%d, v%d" % (sT0, vT))
            e("s_cmp_lg_u32 s%d, 4" % sT0)
            e("s_cbranch_scc1 L_wmax")
            e("v_max_f32_dpp v%d, v%d, v%d row_ror:4 row_mask:0xf bank_mask:0xf" % (vM, vM, vM))
            e("s_nop 1")
            e("v_max_f32_dpp v%d, v%d, v%d row_ror:8 row_mask:0xf bank_mask:0xf" % (vM, vM, vM))
            e("v_mul_f32 v%d, s%d, v%d" % (vNM, sC, vM))
        def mkP(u):
            def f():
                e("v_fma_f32 v%d, v%d, s%d, -v%d" % (vP0, vS + 2 * u, sC, vNM))
                e("v_fma_f32 v%d, v%d, s%d, -v%d" % (vP1, vS + 2 * u + 1, sC, vNM))
                e("v_exp_f32 v%d, v%d" % (vP0, vP0))
                e("v_exp_f32 v%d, v%d" % (vP1, vP1))
                e("s_nop 0")
                e("v_cvt_pk_bf16_f32 v%d, v%d, v%d" % (vA, vP0, vP1))
                e("s_nop 1")
                e("v_mov_b32_dpp v%d, v%d row_ror:12 row_mask:0xf bank_mask:0xf" % (vA + 1, vA))
                e("v_mov_b32_dpp v%d, v%d row_ror:8 row_mask:0xf bank_mask:0xf" % (vA + 2, vA))
                e("v_mov_b32_dpp v%d, v%d row_ror:4 row_mask:0xf bank_mask:0xf" % (vA + 3, vA))
                e("s_nop 1")
                cc = "0" if u == 0 else "v[%d:%d]" % (vACCL, vACCL + 3)
                e("v_mfma_f32_16x16x32_bf16 v[%d:%d], v[%d:%d], v[%d:%d], %s" % (vACCL, vACCL + 3, vA, vA + 3, vQ, vQ + 3, cc))
            return f
        def mkC(u, half):
            base = NL + 8 * u
            def perms(i):
                F = vF + 4 * (i & 1)
                sel = sHI if (i & 1) else sLO
                for p in range(4):
                    e("v_perm_b32 v%d, v%d, v%d, s%d" % (F + p, slot(base + p + 4) + (i >> 1), slot(base + p) + (i >> 1), sel))
            def mf(i):
                F = vF + 4 * (i & 1)
                a = vACC + 4 * i
                cc = "0" if u == 0 else "v[%d:%d]" % (a, a + 3)
                e("v_mfma_f32_16x16x32_bf16 v[%d:%d], v[%d:%d], v[%d:%d], %s" % (a, a + 3, vA, vA + 3, F, F + 3, cc))
            def f():
                i0 = 4 * half
                perms(i0); perms(i0 + 1); mf(i0); perms(i0 + 2); mf(i0 + 1); perms(i0 + 3); mf(i0 + 2)
                e("s_nop 0")
                mf(i0 + 3)
            return f
        for q in range(NQ):
            bundles.append(("A%d" % q, ("ld", 4 * q + 3), list(range(4 * q, 4 * q + 4)), mkA(q)))
            bundles.append(("B%d" % q, None, [], mkB(q)))
        bundles.append(("T", None, [], trans))
        bundles.append(("T2", ("ld", NL + 12), [], trans2))
        for u in range(NU):
            bundles.append(("P%d" % u, None, [], mkP(u)))
            bundles.append(("C%d_0" % u, ("ld", NL + 8 * u + 7), [], mkC(u, 0)))
            bundles.append(("C%d_1" % u, None, list(range(NL + 8 * u, NL + 8 * u + 8)), mkC(u, 1)))

        def ev_setup():
            e("s_mov_b32 s%d, s8" % rV)
            e("s_and_b32 s%d, s9, 0xffff" % (rV + 1))
            e("s_mov_b32 s%d, 0x8000000" % (rV + 2))
            e("s_mov_b32 s%d, 0x20000" % (rV + 3))
            e("s_mov_b32 s%d, %s" % (sC, f32hex(cval)))
            e("s_mov_b32 s%d, 0x05040100" % sLO)
            e("s_mov_b32 s%d, 0x07060302" % sHI)
            e("s_mov_b32 s%d, s14" % rW)
            e("s_and_b32 s%d, s15, 0xffff" % (rW + 1))
            e("s_mov_b32 s%d, 0x%x" % (rW + 2, WSZ))
            e("s_mov_b32 s%d, 0x20000" % (rW + 3))
            e("s_mov_b32 s%d, s10" % rO)
            e("s_and_b32 s%d, s11, 0xffff" % (rO + 1))
            e("s_mov_b32 s%d, 0x10000" % (rO + 2))
            e("s_mov_b32 s%d, 0x20000" % (rO + 3))
            e("s_lshl_b32 s%d, s%d, 2" % (sT1, sT1))
            e("s_add_u32 s12, s12, s%d" % sT1)
            e("s_addc_u32 s13, s13, 0")
            e("s_lshl_b32 s%d, s%d, 10" % (sT0, sWave))
            e("s_lshl_b32 s%d, s2, 12" % sOwn)
            e("s_add_u32 s%d, s%d, s%d" % (sOwn, sOwn, sT0))
            for k in range(1, 4):
                e("s_xor_b32 s%d, s%d, %d" % (sRemOff + k - 1, sOwn, k << 12))
            e("v_and_b32 v%d, 3, v0" % vOa)
            e("v_lshlrev_b32 v%d, 9, v%d" % (vOa, vOa))
            e("v_bfe_u32 v%d, v0, 2, 4" % vMa)
            e("v_lshl_add_u32 v%d, v%d, 4, v%d" % (vOa, vMa, vOa))
            e("s_lshl_b32 s%d, s%d, 2" % (sT0, sWave))
            e("v_add_u32 v%d, s%d, v%d" % (vOa, sT0, vOa))
            e("v_mov_b32 v%d, s%d" % (vMa, sT0))
            e("s_lshl_b32 s%d, s%d, 8" % (sT0, sWave))
            e("s_add_u32 s%d, s%d, s%d" % (sT2, sT2, sT0))
            for r in range(4):
                e("v_mov_b32 v%d, 0" % (vZ + r))
            if 'noclr' in self.abl:
                e("s_mov_b32 s%d, 0x%x" % (sT0, OOB))
            else:
                e("s_mov_b32 s%d, s%d" % (sT0, sOwn))
            self.vmem("buffer_store_dwordx4 v[%d:%d], v%d, s[%d:%d], s%d offen%s" %
                      (vZ, vZ + 3, vVoff, rW, rW + 3, sT0, " sc1 nt" if 'clrnt' in self.abl else (" sc0 sc1" if 'clrsys' in self.abl else " sc1")), ("clr", 3))
            e("ds_write_b64 v%d, v[%d:%d] offset:%d" % (vZ, vZ, vZ + 1, LDS_ROLE))
            e("s_waitcnt lgkmcnt(0)")
            e("s_barrier")
        def ev_ticket():
            if 'notick' in self.abl:
                e('s_mov_b32 s%d, 0' % sTick)
                return
            assert self.landed(("clr", 3))
            e("s_cmp_lg_u32 s%d, 0" % sWave)
            e("s_cbranch_scc1 L_notick")
            e("s_mov_b32 s%d, 1" % sTick)
            e("s_atomic_add s%d, s[12:13], 0 glc" % sTick)
            self.label("L_notick")
        def ev_role():
            e("s_cmp_lg_u32 s%d, 0" % sWave)
            e("s_cbranch_scc1 L_norole")
            e("s_waitcnt lgkmcnt(0)")
            e("s_add_u32 s%d, s%d, 1" % (sTick, sTick))
            e("v_mov_b32 v%d, s%d" % (vT, sTick))
            e("ds_write_b32 v%d, v%d offset:%d" % (vZ, vT, LDS_ROLE))
            self.label("L_norole")
        def rem_load(k, so, track=True):
            t2 = "buffer_load_dwordx4 v[%d:%d], v%d, s[%d:%d], s%d offen%s" % (vRem + 4 * k, vRem + 4 * k + 3, vVoff, rW, rW + 3, so, " sc0 sc1" if 'ldsys' in self.abl else " sc1")
            if track:
                self.vmem(t2, ("rem", k, len(self.vm)))
            else:
                e(t2)
        def rem_loads():
            for k in range(3):
                rem_load(k, sUse + k)
        def ev_prefetch_a():
            e("ds_read_b32 v%d, v%d offset:%d" % (vT, vZ, LDS_ROLE))
        def ev_prefetch_b():
            e("s_waitcnt lgkmcnt(0)")
            e("v_readfirstlane_b32 s%d, v%d" % (sRole, vT))
            e("s_cmp_eq_u32 s%d, 4" % sRole)
            for k in range(3):
                e("s_cselect_b32 s%d, s%d, 0x%x" % (sUse + k, sRemOff + k, OOB))
            rem_loads()
        TOT = 2 * NL
        events = {int(self.tick * TOT): ev_ticket, int(self.role * TOT): ev_role}

        self.vmem("buffer_load_dwordx4 v[%d:%d], v%d, s[%d:%d], s%d offen" % (vQ, vQ + 3, vM, rQ, rQ + 3, sT2), "q")
        freed = set()
        bi = 0
        def emit_bundle(force):
            nonlocal bi
            name, need, frees, fn = bundles[bi]
            if need is not None and not self.landed(need):
                if not force:
                    return False
                self.wait_vm(need)
            self.c(name)
            if not ('nocomp' in self.abl and name[0] != 'T'):
                fn()
            freed.update(frees)
            bi += 1
            return True
        first = window(0)
        for x in range(TOT):
            while x >= NS and (x - NS) not in freed:
                emit_bundle(True)
            w = window(x)
            if x - w >= 0:
                self.wait_vm(("ld", x - w))
                if x - w == 3:
                    stamp()
            issue(x)
            if x == first - 1:
                ev_setup()
            if x in events:
                events[x]()
            n = 0
            while bi < len(bundles) and n < self.per_gap and emit_bundle(False):
                n += 1
        while bi < len(bundles):
            if bi == len(bundles) - 2:
                self.wait_vm(bundles[bi][1])
                ev_prefetch_a()
            emit_bundle(True)
            if bi == len(bundles) - self.pf:
                ev_prefetch_b()
        stamp()
        if 'noepi' in self.abl:
            e('s_waitcnt vmcnt(0)')
            e('s_endpgm')
        e("s_mul_i32 s%d, s%d, %d" % (sT0, sWave, OSTR))
        e("v_add_u32 v%d, s%d, v%d" % (vW0, sT0, vVoff))
        X = 44
        e("v_readlane_b32 s%d, v%d, s%d" % (sT1, vNM, sWave))
        e("s_mov_b64 exec, 1")
        e("ds_write_b128 v%d, v[%d:%d] offset:%d" % (vW0, vACCL, vACCL + 3, LDS_O + 2048))
        e("s_mov_b64 exec, 0xffff")
        for i in range(8):
            if i == 4:
                e("s_nop 1")
            e("ds_write_b128 v%d, v[%d:%d] offset:%d" % (vW0, vACC + 4 * i, vACC + 4 * i + 3, LDS_O + i * 256))
        e("s_mov_b64 exec, -1")
        e("v_mov_b32 v%d, s%d" % (X + 2, sT1))
        e("v_lshlrev_b32 v%d, 2, v%d" % (vW1, vLane))
        e("s_waitcnt lgkmcnt(0)")
        e("s_barrier")
        stamp()
        R = vS
        ll = lambda w: R + w
        oo = lambda w: R + 8 + 2 * w
        for w in range(4):
            for h in range(2):
                e("ds_read_b32 v%d, v%d offset:%d" % (oo(w) + h, vOa, LDS_O + w * OSTR + 256 * h))
        for w in range(4):
            e("ds_read_b32 v%d, v%d offset:%d" % (ll(w), vMa, LDS_O + w * OSTR + 2048))
        e("ds_read_b32 v%d, v%d offset:%d" % (vT, vZ, LDS_ROLE))
        e("s_waitcnt lgkmcnt(5)")
        for h in range(2):
            e("v_add_f32 v%d, v%d, v%d" % (X + h, oo(0) + h, oo(1) + h))
            e("v_add_f32 v%d, v%d, v%d" % (oo(2) + h, oo(2) + h, oo(3) + h))
        for h in range(2):
            e("v_add_f32 v%d, v%d, v%d" % (X + h, X + h, oo(2) + h))
        e("s_waitcnt lgkmcnt(0)")
        e("v_readfirstlane_b32 s%d, v%d" % (sRole, vT))
        e("v_add_f32 v%d, v%d, v%d" % (X + 3, ll(0), ll(1)))
        e("v_add_f32 v%d, v%d, v%d" % (ll(2), ll(2), ll(3)))
        e("v_add_f32 v%d, v%d, v%d" % (X + 3, X + 3, ll(2)))
        if 'nopub' in self.abl:
            e('s_endpgm')
        for r in range(4):
            e("v_or_b32 v%d, 1, v%d" % (X + r, X + r))
        e("s_cmp_eq_u32 s%d, 4" % sRole)
        e("s_cbranch_scc1 L_comb")
        e("buffer_store_dwordx4 v[%d:%d], v%d, s[%d:%d], s%d offen%s" % (X, X + 3, vVoff, rW, rW + 3, sOwn, " sc0 sc1" if 'pubsys' in self.abl else " sc1"))
        if 'stamp' in self.abl:
            sv = self.nst
            stamp(); stamp()
            stamp_store()
            self.nst = sv
        e("s_endpgm")
        self.label("L_comb")
        e("s_mov_b32 s%d, 0" % sCnt)
        T3 = 16
        self.label("L_chk")
        e("s_waitcnt vmcnt(0)")
        for k in range(3):
            e("v_and_b32 v%d, v%d, v%d" % (T3 + k, vRem + 4 * k, vRem + 4 * k + 1))
        for r in range(2, 4):
            for k in range(3):
                e("v_and_b32 v%d, v%d, v%d" % (T3 + k, T3 + k, vRem + 4 * k + r))
        e("v_and_b32 v%d, v%d, v%d" % (vT, T3, T3 + 1))
        e("v_and_b32 v%d, v%d, v%d" % (vT, vT, T3 + 2))
        e("v_and_b32 v%d, 1, v%d" % (vT, vT))
        e("v_cmp_ne_u32 vcc, 1, v%d" % vT)
        e("s_cbranch_vccz L_ok")
        if 'nopoll' in self.abl:
            e("s_branch L_ok")
        e("s_add_u32 s%d, s%d, 1" % (sCnt, sCnt))
        e("s_cmp_gt_u32 s%d, 0x100000" % sCnt)
        e("s_cbranch_scc1 L_ok")
        for k in range(3):
            e("v_and_b32 v%d, 1, v%d" % (vT, T3 + k))
            e("v_cmp_ne_u32 vcc, 1, v%d" % vT)
            e("s_cbranch_vccz L_skip%d" % k)
            rem_load(k, sRemOff + k, track=False)
            self.label("L_skip%d" % k)
        e("s_branch L_chk")
        self.label("L_ok")
        stamp()
        Rs = [X] + [vRem + 4 * k for k in range(3)]
        Mx, Ls, Oa = 16, 18, 20
        e("v_max3_f32 v%d, v%d, v%d, v%d" % (Mx, Rs[0] + 2, Rs[1] + 2, Rs[2] + 2))
        e("v_max_f32 v%d, v%d, v%d" % (Mx, Mx, Rs[3] + 2))
        for k in range(4):
            e("v_sub_f32 v%d, v%d, v%d" % (Rs[k] + 2, Rs[k] + 2, Mx))
        for k in range(4):
            e("v_exp_f32 v%d, v%d" % (Rs[k] + 2, Rs[k] + 2))
        for k in range(4):
            e("v_mul_f32 v%d, v%d, v%d" % (Rs[k] + 3, Rs[k] + 2, Rs[k] + 3))
        for k in range(4):
            for h in range(2):
                e("v_mul_f32 v%d, v%d, v%d" % (Rs[k] + h, Rs[k] + 2, Rs[k] + h))
        e("v_add_f32 v%d, v%d, v%d" % (Ls, Rs[0] + 3, Rs[1] + 3))
        e("v_add_f32 v%d, v%d, v%d" % (Ls + 1, Rs[2] + 3, Rs[3] + 3))
        e("v_add_f32 v%d, v%d, v%d" % (Ls, Ls, Ls + 1))
        e("v_rcp_f32 v%d, v%d" % (Ls, Ls))
        for h in range(2):
            e("v_add_f32 v%d, v%d, v%d" % (Oa + h, Rs[0] + h, Rs[1] + h))
            e("v_add_f32 v%d, v%d, v%d" % (Rs[2] + h, Rs[2] + h, Rs[3] + h))
        for h in range(2):
            e("v_add_f32 v%d, v%d, v%d" % (Oa + h, Oa + h, Rs[2] + h))
        for h in range(2):
            e("v_mul_f32 v%d, v%d, v%d" % (Oa + h, Oa + h, Ls))
        e("v_cvt_pk_bf16_f32 v%d, v%d, v%d" % (Oa, Oa, Oa + 1))
        if 'noout' not in self.abl:
            e("buffer_store_dword v%d, v%d, s[%d:%d], s%d offen%s" % (Oa, vW1, rO, rO + 3, sT2, self.ost))
        if 'stamp' in self.abl:
            e("s_waitcnt vmcnt(0)")
            stamp()
            e("s_mov_b32 s%d, s%d" % (60 + 2 * 7, sCnt))
            self.nst = 8
            stamp_store()
        if 'ampl' in self.abl:
            e("s_waitcnt vmcnt(0)")
            e("s_memrealtime s[62:63]")
            e("s_waitcnt lgkmcnt(0)")
            e("s_sub_u32 s64, s62, s60")
            e("s_max_u32 s64, s64, 3400")
            e("s_sub_u32 s64, s64, 3400")
            e("s_min_u32 s64, s64, 5000")
            e("s_lshl_b32 s64, s64, 3")
            self.label("L_amp")
            e("s_memrealtime s[66:67]")
            e("s_waitcnt lgkmcnt(0)")
            e("s_sub_u32 s65, s66, s62")
            e("s_cmp_lt_u32 s65, s64")
            e("s_cbranch_scc1 L_amp")
        self.label("L_end")
        e("s_endpgm")

    def text(self):
        self.build()
        hdr = open("standalone__gqa_softmax__sampling.s.ref").read().split("; @launch")[0]
        out = hdr
        out += "; @launch grid=(256,1,1) block=(256,1,1) lds=%d\n" % (self.lds_bytes)
        out += "; ---------------------------------------------------------------------------------------------\n;  loads   : nt, paced with counted vmcnt (5 KiB in flight per wave, 8 KiB for the last 30 %).\n; ---------------------------------------------------------------------------------------------\n"
        out += '.amdgcn_target "amdgcn-amd-amdhsa--gfx950"\n.text\n'
        k = self.name + "_kernel"
        out += ".globl %s\n.p2align 8\n.type %s,@function\n%s:\n" % (k, k, k)
        out += "\n".join(self.lines) + "\n"
        acc = (self.nvgpr + 3) // 4 * 4
        out += """.section .rodata,"a"
.p2align 6
.amdhsa_kernel %s
  .amdhsa_next_free_vgpr %d
  .amdhsa_next_free_sgpr %d
  .amdhsa_accum_offset %d
  .amdhsa_group_segment_fixed_size 0
  .amdhsa_kernarg_size 48
  .amdhsa_user_sgpr_count 2
  .amdhsa_user_sgpr_kernarg_segment_ptr 1
  .amdhsa_system_sgpr_workgroup_id_x 1
.end_amdhsa_kernel
""" % (k, self.nvgpr, 80 if ("stamp" in self.abl or "ampl" in self.abl) else 56, acc)
        return out

if __name__ == "__main__":
    ap = argparse.ArgumentParser()
    ap.add_argument("--w1", type=int, default=5)
    ap.add_argument("--w2", type=int, default=8)
    ap.add_argument("--w0", type=int, default=None)
    ap.add_argument("--frac", type=float, default=0.7)
    ap.add_argument("--ns", type=int, default=24)
    ap.add_argument("--abl", default="")
    ap.add_argument("--tick", type=float, default=0.96)
    ap.add_argument("--role", type=float, default=0.99)
    ap.add_argument("--pg", type=int, default=1)
    ap.add_argument("--pf", type=int, default=0)
    ap.add_argument("--mix", type=int, default=0)
    ap.add_argument("--ost", default=" sc1")
    ap.add_argument("--ldspad", type=int, default=0)
    ap.add_argument("--w3", type=int, default=0)
    ap.add_argument("--xr", type=int, default=0)
    ap.add_argument("--pat", default="w0,w1,t4,t0,t1,t2,t3,s0,s1")
    ap.add_argument("--xors", default="w0>14,s0>12,s1>13")
    ap.add_argument("--M", default="s0,s1,p0,p1,p2,p3,p4,p5")
    ap.add_argument("--masks", default="")
    ap.add_argument("--ld", default=" nt")
    ap.add_argument("--frac3", type=float, default=1.0)
    ap.add_argument("-o", default="standalone__gqa_softmax__sampling.s")
    a = ap.parse_args()
    g = Gen(W1=a.w1, W2=a.w2, frac=a.frac, NS=a.ns, abl=a.abl, tick=a.tick, role=a.role, W0=a.w0, per_gap=a.pg, pf=a.pf, mix=a.mix, ost=a.ost, ldspad=a.ldspad, W3=a.w3, frac3=a.frac3, xr=a.xr, pat=a.pat, xors=a.xors, M=a.M, masks=a.masks, ld=a.ld)
    open(a.o, "w").write(g.text())
    print("vgprs", g.nvgpr, "lds", g.lds_bytes, "lines", len(g.lines))
```

```python
import struct, sys, math, argparse

def f32hex(x):
    return "0x%08x" % struct.unpack("<I", struct.pack("<f", x))[0]

class Gen:
    def __init__(self, W1=5, W2=8, frac=0.7, NS=24, ld=" nt", abl="", tick=0.86, role=0.93, W0=None, per_gap=1, pf=0, mix=0, ost=' sc1', ldspad=0, W3=0, frac3=1.0, xr=0, pat='w0,w1,t4,t0,t1,t2,t3,s0,s1', xors='w0>14,s0>12,s1>13', M='s0,s1,p0,p1,p2,p3,p4,p5', masks='',
                 name="standalone__gqa_softmax__sampling"):
        self.W1, self.W2, self.frac, self.NS = W1, W2, frac, NS
        self.W0 = W0
        self.ld, self.abl, self.name = ld, abl, name
        self.tick, self.role = tick, role
        self.per_gap = per_gap
        self.pf = pf
        self.mix = mix
        self.ost = ost
        self.ldspad = ldspad
        self.W3, self.frac3 = W3, frac3
        self.xr = xr
        self.pat = pat.split(',')
        self.M = M.split(',')
        self.masks = dict((kv.split('=')[0], int(kv.split('=')[1], 16)) for kv in masks.split(',') if kv)
        self.xors = [x for x in xors.split(',') if x]
        self.lines = []
        self.vm = []

    def e(self, s): self.lines.append("    " + s)
    def label(self, s): self.lines.append(s + ":")
    def c(self, s): self.lines.append("    ; " + s)
    def vmem(self, text, tag):
        self.e(text); self.vm.append(tag)
    def outstanding_after(self, tag):
        return len(self.vm) - 1 - self.vm.index(tag)
    def wait_vm(self, tag):
        n = self.outstanding_after(tag)
        assert n <= 63
        if self.known >= self.vm.index(tag):
            return
        self.e("s_waitcnt vmcnt(%d)" % n)
        self.known = self.vm.index(tag)
    def wait_cnt(self, n):
        idx = len(self.vm) - 1 - n
        if idx >= 0 and self.known < idx:
            self.e("s_waitcnt vmcnt(%d)" % n)
            self.known = idx
    def landed(self, tag):
        return tag in self.vm and self.vm.index(tag) <= self.known

    def build(self):
        NW = 4
        KPW = 512
        NL = KPW // 4
        NQ = KPW // 16
        NU = KPW // 32
        NS = self.NS
        self.known = -1
        e = self.e
        vKoff, vVoff, vLane = 1, 2, 3
        vQ = 4
        vACC = 8
        vACCL = 40
        vA = 44
        vF = 48
        vM, vW0, vW1, vT = 56, 57, 58, 59
        vNM = 60
        vP0, vP1 = 61, 62
        vZ = 64
        vRem = 68
        vRemO = 80
        vOa, vMa = 86, 87
        vS = 88
        vWIN = 120
        nvgpr = vWIN + 4 * NS
        assert nvgpr <= 256
        self.nvgpr = nvgpr
        slot = lambda x: vWIN + 4 * (x % NS)
        rK, rV, rQ, rW, rO = 16, 20, 24, 28, 32
        sOffK, sOffV = 36, 37
        sC, sLO, sHI = 38, 39, 40
        sT0, sT1, sT2 = 41, 42, 43
        sWave, sTick, sRole = 44, 45, 46
        sRemOff = 47
        sUse = 50
        sOwn = 53
        sCnt = 54
        sD = 12
        LDS_ROLE = 0
        LDS_CNT = 4
        LDS_M = 64
        LDS_O = 128
        OSTR = 2064
        self.lds_bytes = max(LDS_O + NW * OSTR, self.ldspad)
        cval = math.log2(math.e) / math.sqrt(128.0)
        WSZ = 0x100000 if 'stamp' not in self.abl else 0x200000
        OOB = 0x7000000

        self.nst = 0
        def stamp():
            if 'stamp' in self.abl:
                e("s_memrealtime s[%d:%d]" % (60 + 2 * self.nst, 61 + 2 * self.nst))
                self.nst += 1
        def stamp_store():
            if 'stamp' in self.abl:
                e("s_waitcnt lgkmcnt(0)")
                e("s_mov_b64 exec, 1")
                for i in range(8):
                    e("v_mov_b32 v%d, s%d" % (16 + i, 60 + 2 * i if i < self.nst else 60))
                e("s_lshl_b32 s%d, s2, 7" % sT0)
                e("s_lshl_b32 s%d, s%d, 5" % (sT1, sWave))
                e("s_add_u32 s%d, s%d, s%d" % (sT0, sT0, sT1))
                e("s_add_u32 s%d, s%d, 0x100000" % (sT0, sT0))
                e("v_mov_b32 v24, 0")
                e("buffer_store_dwordx4 v[16:19], v24, s[%d:%d], s%d offen" % (rW, rW + 3, sT0))
                e("buffer_store_dwordx4 v[20:23], v24, s[%d:%d], s%d offen offset:16" % (rW, rW + 3, sT0))
                e("s_mov_b64 exec, -1")

        stamp()
        if 'ampl' in self.abl:
            e("s_memrealtime s[60:61]")
        e("s_load_dwordx4 s[4:7], s[0:1], 0")
        e("s_load_dwordx4 s[8:11], s[0:1], 16")
        e("s_load_dwordx4 s[12:15], s[0:1], 32")
        e("s_cmp_ge_u32 s2, 256")
        e("s_cbranch_scc1 L_end")
        order = ['s0', 's1', 'p0', 'p1', 'p2', 'p3', 'p4', 'p5']
        assert sorted(self.M) == sorted(order)
        if self.M != order:
            keep = sum(1 << i for i, tok in enumerate(self.M) if order[i] == tok)
            e("s_and_b32 s3, s2, 0x%x" % keep)
            for i, tok in enumerate(self.M):
                if order[i] != tok:
                    e("s_bitcmp1_b32 s2, %d" % i)
                    e("s_cselect_b32 s%d, 0x%x, 0" % (sT0, 1 << order.index(tok)))
                    e("s_or_b32 s3, s3, s%d" % sT0)
            e("s_mov_b32 s2, s3")
        e("v_and_b32 v%d, 63, v0" % vLane)
        e("v_lshrrev_b32 v%d, 6, v0" % vT)
        e("v_and_b32 v%d, 3, v0" % vW1)
        e("v_bfe_u32 v%d, v0, 2, 2" % vW0)
        e("v_bfe_u32 v%d, v0, 4, 2" % vNM)
        e("v_lshlrev_b32 v%d, 6, v%d" % (vNM, vNM))
        e("v_readfirstlane_b32 s%d, v%d" % (sWave, vT))
        e("v_lshl_add_u32 v%d, v%d, 4, v%d" % (vKoff, vW1, vNM))
        e("v_lshl_add_u32 v%d, v%d, 8, v%d" % (vKoff, vW0, vKoff))
        e("v_lshl_add_u32 v%d, v%d, 8, v%d" % (vM, vW1, vNM))
        e("v_lshl_add_u32 v%d, v%d, 4, v%d" % (vM, vW0, vM))
        e("v_lshlrev_b32 v%d, 4, v%d" % (vVoff, vLane))
        pos = {tok: 12 + i for i, tok in enumerate(self.pat)}
        contrib = {"w0": 1 << pos["w0"], "w1": 1 << pos["w1"], "s0": 1 << pos["s0"], "s1": 1 << pos["s1"]}
        for x_ in self.xors:
            a_, b_ = x_.split(">")
            contrib[a_] ^= 1 << int(b_)
        tb = [1 << pos["t%d" % i] for i in range(5)]
        if self.masks:
            contrib = {k_: self.masks[k_] for k_ in ("w0", "w1", "s0", "s1")}
            tb = [self.masks["t%d" % i] for i in range(5)]
        sBase = 55
        e("s_lshr_b32 s%d, s2, 2" % sBase)
        e("s_lshl_b32 s%d, s%d, 21" % (sBase, sBase))
        for tok, src, b_ in (("s0", 2, 0), ("s1", 2, 1), ("w0", sWave, 0), ("w1", sWave, 1)):
            e("s_bitcmp1_b32 s%d, %d" % (src, b_))
            e("s_cselect_b32 s%d, 0x%x, 0" % (sT0, contrib[tok]))
            e("s_xor_b32 s%d, s%d, s%d" % (sBase, sBase, sT0))
        def tmask(t_):
            v_ = 0
            for i in range(5):
                if (t_ >> i) & 1:
                    v_ ^= tb[i]
            return v_
        seen = set()
        for w_ in range(4):
            for s_ in range(4):
                for t_ in range(32):
                    a_ = tmask(t_)
                    for tok, bit in (("w0", w_ & 1), ("w1", w_ >> 1), ("s0", s_ & 1), ("s1", s_ >> 1)):
                        if bit:
                            a_ ^= contrib[tok]
                    seen.add(a_)
        assert len(seen) == 512 and max(seen) < (1 << 21) and min(x_ & 0xfff for x_ in seen) == 0
        e("s_lshr_b32 s%d, s2, 2" % sT1)
        e("s_lshl_b32 s%d, s%d, 10" % (sT2, sT1))
        e("s_mov_b32 s%d, 0x8000000" % (rK + 2))
        e("s_mov_b32 s%d, 0x20000" % (rK + 3))
        e("s_mov_b32 s%d, 0x10000" % (rQ + 2))
        e("s_mov_b32 s%d, 0x20000" % (rQ + 3))
        e("s_waitcnt lgkmcnt(0)")
        e("s_mov_b32 s%d, s6" % rK)
        e("s_and_b32 s%d, s7, 0xffff" % (rK + 1))
        e("s_mov_b32 s%d, s4" % rQ)
        e("s_and_b32 s%d, s5, 0xffff" % (rQ + 1))
        gstride = 4096 * NW
        st = {"k": 0, "v": 0}
        def issue(x):
            r = slot(x)
            if x < NL:
                grp, j = divmod(x, 4)
                if j == 0 and grp:
                    e("s_xor_b32 s%d, s%d, 0x%x" % (sOffK, sBase, tmask(grp)))
                so = sOffK if grp else sBase
                self.vmem("buffer_load_dwordx4 v[%d:%d], v%d, s[%d:%d], s%d offen offset:%d%s" %
                          (r, r + 3, vKoff, rK, rK + 3, so, j * 1024, self.ld), ("ld", x))
            else:
                grp, j = divmod(x - NL, 4)
                if j == 0 and grp:
                    e("s_xor_b32 s%d, s%d, 0x%x" % (sOffV, sBase, tmask(grp)))
                so = sOffV if grp else sBase
                self.vmem("buffer_load_dwordx4 v[%d:%d], v%d, s[%d:%d], s%d offen offset:%d%s" %
                          (r, r + 3, vVoff, rV, rV + 3, so, j * 1024, self.ld), ("ld", x))
        def window(x):
            if self.W0 is not None and x < self.W0:
                return self.W0
            if x < self.frac * 2 * NL:
                return self.W1 + (1 if (self.mix and x > 8 and x % self.mix == 0) else 0)
            if self.W3 and x >= self.frac3 * 2 * NL:
                return self.W3
            return self.W2

        bundles = []
        D = vACC
        def mkA(q):
            def f():
                for j in range(4):
                    r = slot(4 * q + j)
                    e("v_mfma_f32_16x16x32_bf16 v[%d:%d], v[%d:%d], v[%d:%d], 0" %
                      (D + 4 * j, D + 4 * j + 3, r, r + 3, vQ, vQ + 3))
                e("s_nop 4")
            return f
        def mkB(q):
            def f():
                d = lambda j, r: D + 4 * j + r
                rot = "row_ror:12"
                e("s_nop 2")
                for (w, j0) in ((vW0, 0), (vW1, 2)):
                    e("v_add_f32_dpp v%d, v%d, v%d %s row_mask:0xf bank_mask:0x1" % (w, d(j0, 1), d(j0, 0), rot))
                    e("v_add_f32_dpp v%d, v%d, v%d %s row_mask:0xf bank_mask:0x4" % (w, d(j0, 3), d(j0, 2), rot))
                    e("v_add_f32_dpp v%d, v%d, v%d %s row_mask:0xf bank_mask:0x2" % (w, d(j0 + 1, 2), d(j0 + 1, 1), rot))
                    e("v_add_f32_dpp v%d, v%d, v%d %s row_mask:0xf bank_mask:0x8" % (w, d(j0 + 1, 0), d(j0 + 1, 3), rot))
                e("v_add_f32_dpp v%d, v%d, v%d row_ror:8 row_mask:0xf bank_mask:0x3" % (vS + q, vW0, vW0))
                e("s_nop 0")
                e("v_add_f32_dpp v%d, v%d, v%d row_ror:8 row_mask:0xf bank_mask:0xc" % (vS + q, vW1, vW1))
                if q == 0:
                    e("v_mov_b32 v%d, v%d" % (vM, vS))
                else:
                    e("v_max_f32 v%d, v%d, v%d" % (vM, vM, vS + q))
            return f
        def xlane_max(v, t):
            e("s_nop 1")
            e("v_max_f32_dpp v%d, v%d, v%d row_ror:4 row_mask:0xf bank_mask:0xf" % (v, v, v))
            e("s_nop 1")
            e("v_max_f32_dpp v%d, v%d, v%d row_ror:8 row_mask:0xf bank_mask:0xf" % (v, v, v))
            e("v_mov_b32 v%d, v%d" % (t, v))
            e("s_nop 1")
            e("v_permlane16_swap_b32 v%d, v%d" % (v, t))
            e("v_max_f32 v%d, v%d, v%d" % (v, v, t))
            e("v_mov_b32 v%d, v%d" % (t, v))
            e("s_nop 1")
            e("v_permlane32_swap_b32 v%d, v%d" % (v, t))
            e("v_max_f32 v%d, v%d, v%d" % (v, v, t))
        def trans():
            assert self.landed(("clr", 3))
            stamp()
            xlane_max(vM, vW0)
            e("v_and_b32 v%d, 15, v%d" % (vW1, vLane))
            e("v_lshlrev_b32 v%d, 2, v%d" % (vW1, vW1))
            e("s_lshl_b32 s%d, s%d, 4" % (sT0, sWave))
            e("v_add_u32 v%d, s%d, v%d" % (vW0, sT0, vW1))
            e("v_mov_b32 v%d, 1" % vT)
            e("s_mov_b64 exec, 0xf")
            e("ds_write_b32 v%d, v%d offset:%d" % (vW0, vM, LDS_M))
            e("s_mov_b64 exec, 1")
            e("ds_add_u32 v%d, v%d offset:%d" % (vZ, vT, LDS_CNT))
            e("s_mov_b64 exec, -1")
            for r in range(4):
                e("v_mov_b32 v%d, 0x3f803f80" % (vQ + r))
        def trans2():
            self.label("L_wmax")
            e("ds_read_b32 v%d, v%d offset:%d" % (vT, vZ, LDS_CNT))
            e("ds_read_b32 v%d, v%d offset:%d" % (vM, vW1, LDS_M))
            e("s_waitcnt lgkmcnt(0)")
            e("v_readfirstlane_b32 s%d, v%d" % (sT0, vT))
            e("s_cmp_lg_u32 s%d, 4" % sT0)
            e("s_cbranch_scc1 L_wmax")
            e("v_max_f32_dpp v%d, v%d, v%d row_ror:4 row_mask:0xf bank_mask:0xf" % (vM, vM, vM))
            e("s_nop 1")
            e("v_max_f32_dpp v%d, v%d, v%d row_ror:8 row_mask:0xf bank_mask:0xf" % (vM, vM, vM))
            e("v_mul_f32 v%d, s%d, v%d" % (vNM, sC, vM))
        def mkP(u):
            def f():
                e("v_fma_f32 v%d, v%d, s%d, -v%d" % (vP0, vS + 2 * u, sC, vNM))
                e("v_fma_f32 v%d, v%d, s%d, -v%d" % (vP1, vS + 2 * u + 1, sC, vNM))
                e("v_exp_f32 v%d, v%d" % (vP0, vP0))
                e("v_exp_f32 v%d, v%d" % (vP1, vP1))
                e("s_nop 0")
                e("v_cvt_pk_bf16_f32 v%d, v%d, v%d" % (vA, vP0, vP1))
                e("s_nop 1")
                e("v_mov_b32_dpp v%d, v%d row_ror:12 row_mask:0xf bank_mask:0xf" % (vA + 1, vA))
                e("v_mov_b32_dpp v%d, v%d row_ror:8 row_mask:0xf bank_mask:0xf" % (vA + 2, vA))
                e("v_mov_b32_dpp v%d, v%d row_ror:4 row_mask:0xf bank_mask:0xf" % (vA + 3, vA))
                e("s_nop 1")
                cc = "0" if u == 0 else "v[%d:%d]" % (vACCL, vACCL + 3)
                e("v_mfma_f32_16x16x32_bf16 v[%d:%d], v[%d:%d], v[%d:%d], %s" % (vACCL, vACCL + 3, vA, vA + 3, vQ, vQ + 3, cc))
            return f
        def mkC(u, half):
            base = NL + 8 * u
            def perms(i):
                F = vF + 4 * (i & 1)
                sel = sHI if (i & 1) else sLO
                for p in range(4):
                    e("v_perm_b32 v%d, v%d, v%d, s%d" % (F + p, slot(base + p + 4) + (i >> 1), slot(base + p) + (i >> 1), sel))
            def mf(i):
                F = vF + 4 * (i & 1)
                a = vACC + 4 * i
                cc = "0" if u == 0 else "v[%d:%d]" % (a, a + 3)
                e("v_mfma_f32_16x16x32_bf16 v[%d:%d], v[%d:%d], v[%d:%d], %s" % (a, a + 3, vA, vA + 3, F, F + 3, cc))
            def f():
                i0 = 4 * half
                perms(i0); perms(i0 + 1); mf(i0); perms(i0 + 2); mf(i0 + 1); perms(i0 + 3); mf(i0 + 2)
                e("s_nop 0")
                mf(i0 + 3)
            return f
        for q in range(NQ):
            bundles.append(("A%d" % q, ("ld", 4 * q + 3), list(range(4 * q, 4 * q + 4)), mkA(q)))
            bundles.append(("B%d" % q, None, [], mkB(q)))
        bundles.append(("T", None, [], trans))
        bundles.append(("T2", ("ld", NL + 12), [], trans2))
        for u in range(NU):
            bundles.append(("P%d" % u, None, [], mkP(u)))
            bundles.append(("C%d_0" % u, ("ld", NL + 8 * u + 7), [], mkC(u, 0)))
            bundles.append(("C%d_1" % u, None, list(range(NL + 8 * u, NL + 8 * u + 8)), mkC(u, 1)))

        def ev_setup():
            e("s_mov_b32 s%d, s8" % rV)
            e("s_and_b32 s%d, s9, 0xffff" % (rV + 1))
            e("s_mov_b32 s%d, 0x8000000" % (rV + 2))
            e("s_mov_b32 s%d, 0x20000" % (rV + 3))
            e("s_mov_b32 s%d, %s" % (sC, f32hex(cval)))
            e("s_mov_b32 s%d, 0x05040100" % sLO)
            e("s_mov_b32 s%d, 0x07060302" % sHI)
            e("s_mov_b32 s%d, s14" % rW)
            e("s_and_b32 s%d, s15, 0xffff" % (rW + 1))
            e("s_mov_b32 s%d, 0x%x" % (rW + 2, WSZ))
            e("s_mov_b32 s%d, 0x20000" % (rW + 3))
            e("s_mov_b32 s%d, s10" % rO)
            e("s_and_b32 s%d, s11, 0xffff" % (rO + 1))
            e("s_mov_b32 s%d, 0x10000" % (rO + 2))
            e("s_mov_b32 s%d, 0x20000" % (rO + 3))
            e("s_lshl_b32 s%d, s%d, 2" % (sT1, sT1))
            e("s_add_u32 s12, s12, s%d" % sT1)
            e("s_addc_u32 s13, s13, 0")
            e("s_lshl_b32 s%d, s%d, 10" % (sT0, sWave))
            e("s_lshl_b32 s%d, s2, 12" % sOwn)
            e("s_add_u32 s%d, s%d, s%d" % (sOwn, sOwn, sT0))
            for k in range(1, 4):
                e("s_xor_b32 s%d, s%d, %d" % (sRemOff + k - 1, sOwn, k << 12))
            e("v_and_b32 v%d, 3, v0" % vOa)
            e("v_lshlrev_b32 v%d, 9, v%d" % (vOa, vOa))
            e("v_bfe_u32 v%d, v0, 2, 4" % vMa)
            e("v_lshl_add_u32 v%d, v%d, 4, v%d" % (vOa, vMa, vOa))
            e("s_lshl_b32 s%d, s%d, 2" % (sT0, sWave))
            e("v_add_u32 v%d, s%d, v%d" % (vOa, sT0, vOa))
            e("v_mov_b32 v%d, s%d" % (vMa, sT0))
            e("s_lshl_b32 s%d, s%d, 8" % (sT0, sWave))
            e("s_add_u32 s%d, s%d, s%d" % (sT2, sT2, sT0))
            for r in range(4):
                e("v_mov_b32 v%d, 0" % (vZ + r))
            if 'noclr' in self.abl:
                e("s_mov_b32 s%d, 0x%x" % (sT0, OOB))
            else:
                e("s_mov_b32 s%d, s%d" % (sT0, sOwn))
            self.vmem("buffer_store_dwordx4 v[%d:%d], v%d, s[%d:%d], s%d offen%s" %
                      (vZ, vZ + 3, vVoff, rW, rW + 3, sT0, " sc1 nt" if 'clrnt' in self.abl else (" sc0 sc1" if 'clrsys' in self.abl else " sc1")), ("clr", 3))
            e("ds_write_b64 v%d, v[%d:%d] offset:%d" % (vZ, vZ, vZ + 1, LDS_ROLE))
            e("s_waitcnt lgkmcnt(0)")
            e("s_barrier")
        def ev_ticket():
            if 'notick' in self.abl:
                e('s_mov_b32 s%d, 0' % sTick)
                return
            assert self.landed(("clr", 3))
            e("s_cmp_lg_u32 s%d, 0" % sWave)
            e("s_cbranch_scc1 L_notick")
            e("s_mov_b32 s%d, 1" % sTick)
            e("s_atomic_add s%d, s[12:13], 0 glc" % sTick)
            self.label("L_notick")
        def ev_role():
            e("s_cmp_lg_u32 s%d, 0" % sWave)
            e("s_cbranch_scc1 L_norole")
            e("s_waitcnt lgkmcnt(0)")
            e("s_add_u32 s%d, s%d, 1" % (sTick, sTick))
            e("v_mov_b32 v%d, s%d" % (vT, sTick))
            e("ds_write_b32 v%d, v%d offset:%d" % (vZ, vT, LDS_ROLE))
            self.label("L_norole")
        def rem_load(k, so, track=True):
            t2 = "buffer_load_dwordx4 v[%d:%d], v%d, s[%d:%d], s%d offen sc1" % (vRem + 4 * k, vRem + 4 * k + 3, vVoff, rW, rW + 3, so)
            if track:
                self.vmem(t2, ("rem", k, len(self.vm)))
            else:
                e(t2)
        def rem_loads():
            for k in range(3):
                rem_load(k, sUse + k)
        def ev_prefetch_a():
            e("ds_read_b32 v%d, v%d offset:%d" % (vT, vZ, LDS_ROLE))
        def ev_prefetch_b():
            e("s_waitcnt lgkmcnt(0)")
            e("v_readfirstlane_b32 s%d, v%d" % (sRole, vT))
            e("s_cmp_eq_u32 s%d, 4" % sRole)
            for k in range(3):
                e("s_cselect_b32 s%d, s%d, 0x%x" % (sUse + k, sRemOff + k, OOB))
            rem_loads()
        TOT = 2 * NL
        events = {int(self.tick * TOT): ev_ticket, int(self.role * TOT): ev_role}

        self.vmem("buffer_load_dwordx4 v[%d:%d], v%d, s[%d:%d], s%d offen" % (vQ, vQ + 3, vM, rQ, rQ + 3, sT2), "q")
        freed = set()
        bi = 0
        def emit_bundle(force):
            nonlocal bi
            name, need, frees, fn = bundles[bi]
            if need is not None and not self.landed(need):
                if not force:
                    return False
                self.wait_vm(need)
            self.c(name)
            if not ('nocomp' in self.abl and name[0] != 'T'):
                fn()
            freed.update(frees)
            bi += 1
            return True
        first = window(0)
        for x in range(TOT):
            while x >= NS and (x - NS) not in freed:
                emit_bundle(True)
            w = window(x)
            if x - w >= 0:
                self.wait_vm(("ld", x - w))
                if x - w == 3:
                    stamp()
            issue(x)
            if x == first - 1:
                ev_setup()
            if x in events:
                events[x]()
            n = 0
            while bi < len(bundles) and n < self.per_gap and emit_bundle(False):
                n += 1
        while bi < len(bundles):
            if bi == len(bundles) - 2:
                self.wait_vm(bundles[bi][1])
                ev_prefetch_a()
            emit_bundle(True)
            if bi == len(bundles) - self.pf:
                ev_prefetch_b()
        stamp()
        if 'noepi' in self.abl:
            e('s_waitcnt vmcnt(0)')
            e('s_endpgm')
        e("s_mul_i32 s%d, s%d, %d" % (sT0, sWave, OSTR))
        e("v_add_u32 v%d, s%d, v%d" % (vW0, sT0, vVoff))
        X = 44
        e("v_readlane_b32 s%d, v%d, s%d" % (sT1, vNM, sWave))
        e("s_mov_b64 exec, 1")
        e("ds_write_b128 v%d, v[%d:%d] offset:%d" % (vW0, vACCL, vACCL + 3, LDS_O + 2048))
        e("s_mov_b64 exec, 0xffff")
        for i in range(8):
            if i == 4:
                e("s_nop 1")
            e("ds_write_b128 v%d, v[%d:%d] offset:%d" % (vW0, vACC + 4 * i, vACC + 4 * i + 3, LDS_O + i * 256))
        e("s_mov_b64 exec, -1")
        e("v_mov_b32 v%d, s%d" % (X + 2, sT1))
        e("v_lshlrev_b32 v%d, 2, v%d" % (vW1, vLane))
        e("s_waitcnt lgkmcnt(0)")
        e("s_barrier")
        stamp()
        R = vS
        ll = lambda w: R + w
        oo = lambda w: R + 8 + 2 * w
        for w in range(4):
            for h in range(2):
                e("ds_read_b32 v%d, v%d offset:%d" % (oo(w) + h, vOa, LDS_O + w * OSTR + 256 * h))
        for w in range(4):
            e("ds_read_b32 v%d, v%d offset:%d" % (ll(w), vMa, LDS_O + w * OSTR + 2048))
        e("ds_read_b32 v%d, v%d offset:%d" % (vT, vZ, LDS_ROLE))
        e("s_waitcnt lgkmcnt(5)")
        for h in range(2):
            e("v_add_f32 v%d, v%d, v%d" % (X + h, oo(0) + h, oo(1) + h))
            e("v_add_f32 v%d, v%d, v%d" % (oo(2) + h, oo(2) + h, oo(3) + h))
        for h in range(2):
            e("v_add_f32 v%d, v%d, v%d" % (X + h, X + h, oo(2) + h))
        e("s_waitcnt lgkmcnt(0)")
        e("v_readfirstlane_b32 s%d, v%d" % (sRole, vT))
        e("v_add_f32 v%d, v%d, v%d" % (X + 3, ll(0), ll(1)))
        e("v_add_f32 v%d, v%d, v%d" % (ll(2), ll(2), ll(3)))
        e("v_add_f32 v%d, v%d, v%d" % (X + 3, X + 3, ll(2)))
        if 'nopub' in self.abl:
            e('s_endpgm')
        for r in range(4):
            e("v_or_b32 v%d, 1, v%d" % (X + r, X + r))
        e("s_cmp_eq_u32 s%d, 4" % sRole)
        e("s_cbranch_scc1 L_comb")
        e("buffer_store_dwordx4 v[%d:%d], v%d, s[%d:%d], s%d offen sc1" % (X, X + 3, vVoff, rW, rW + 3, sOwn))
        if 'stamp' in self.abl:
            sv = self.nst
            stamp(); stamp()
            stamp_store()
            self.nst = sv
        e("s_endpgm")
        self.label("L_comb")
        e("s_mov_b32 s%d, 0" % sCnt)
        T3 = 16
        self.label("L_chk")
        e("s_waitcnt vmcnt(0)")
        for k in range(3):
            e("v_and_b32 v%d, v%d, v%d" % (T3 + k, vRem + 4 * k, vRem + 4 * k + 1))
        for r in range(2, 4):
            for k in range(3):
                e("v_and_b32 v%d, v%d, v%d" % (T3 + k, T3 + k, vRem + 4 * k + r))
        e("v_and_b32 v%d, v%d, v%d" % (vT, T3, T3 + 1))
        e("v_and_b32 v%d, v%d, v%d" % (vT, vT, T3 + 2))
        e("v_and_b32 v%d, 1, v%d" % (vT, vT))
        e("v_cmp_ne_u32 vcc, 1, v%d" % vT)
        e("s_cbranch_vccz L_ok")
        if 'nopoll' in self.abl:
            e("s_branch L_ok")
        e("s_add_u32 s%d, s%d, 1" % (sCnt, sCnt))
        e("s_cmp_gt_u32 s%d, 0x100000" % sCnt)
        e("s_cbranch_scc1 L_ok")
        for k in range(3):
            e("v_and_b32 v%d, 1, v%d" % (vT, T3 + k))
            e("v_cmp_ne_u32 vcc, 1, v%d" % vT)
            e("s_cbranch_vccz L_skip%d" % k)
            rem_load(k, sRemOff + k, track=False)
            self.label("L_skip%d" % k)
        e("s_branch L_chk")
        self.label("L_ok")
        stamp()
        Rs = [X] + [vRem + 4 * k for k in range(3)]
        Mx, Ls, Oa = 16, 18, 20
        e("v_max3_f32 v%d, v%d, v%d, v%d" % (Mx, Rs[0] + 2, Rs[1] + 2, Rs[2] + 2))
        e("v_max_f32 v%d, v%d, v%d" % (Mx, Mx, Rs[3] + 2))
        for k in range(4):
            e("v_sub_f32 v%d, v%d, v%d" % (Rs[k] + 2, Rs[k] + 2, Mx))
        for k in range(4):
            e("v_exp_f32 v%d, v%d" % (Rs[k] + 2, Rs[k] + 2))
        for k in range(4):
            e("v_mul_f32 v%d, v%d, v%d" % (Rs[k] + 3, Rs[k] + 2, Rs[k] + 3))
        for k in range(4):
            for h in range(2):
                e("v_mul_f32 v%d, v%d, v%d" % (Rs[k] + h, Rs[k] + 2, Rs[k] + h))
        e("v_add_f32 v%d, v%d, v%d" % (Ls, Rs[0] + 3, Rs[1] + 3))
        e("v_add_f32 v%d, v%d, v%d" % (Ls + 1, Rs[2] + 3, Rs[3] + 3))
        e("v_add_f32 v%d, v%d, v%d" % (Ls, Ls, Ls + 1))
        e("v_rcp_f32 v%d, v%d" % (Ls, Ls))
        for h in range(2):
            e("v_add_f32 v%d, v%d, v%d" % (Oa + h, Rs[0] + h, Rs[1] + h))
            e("v_add_f32 v%d, v%d, v%d" % (Rs[2] + h, Rs[2] + h, Rs[3] + h))
        for h in range(2):
            e("v_add_f32 v%d, v%d, v%d" % (Oa + h, Oa + h, Rs[2] + h))
        for h in range(2):
            e("v_mul_f32 v%d, v%d, v%d" % (Oa + h, Oa + h, Ls))
        e("v_cvt_pk_bf16_f32 v%d, v%d, v%d" % (Oa, Oa, Oa + 1))
        if 'noout' not in self.abl:
            e("buffer_store_dword v%d, v%d, s[%d:%d], s%d offen%s" % (Oa, vW1, rO, rO + 3, sT2, self.ost))
        if 'stamp' in self.abl:
            e("s_waitcnt vmcnt(0)")
            stamp()
            e("s_mov_b32 s%d, s%d" % (60 + 2 * 7, sCnt))
            self.nst = 8
            stamp_store()
        if 'ampl' in self.abl:
            e("s_waitcnt vmcnt(0)")
            e("s_memrealtime s[62:63]")
            e("s_waitcnt lgkmcnt(0)")
            e("s_sub_u32 s64, s62, s60")
            e("s_max_u32 s64, s64, 3400")
            e("s_sub_u32 s64, s64, 3400")
            e("s_min_u32 s64, s64, 5000")
            e("s_lshl_b32 s64, s64, 3")
            self.label("L_amp")
            e("s_memrealtime s[66:67]")
            e("s_waitcnt lgkmcnt(0)")
            e("s_sub_u32 s65, s66, s62")
            e("s_cmp_lt_u32 s65, s64")
            e("s_cbranch_scc1 L_amp")
        self.label("L_end")
        e("s_endpgm")

    def text(self):
        self.build()
        hdr = open("standalone__gqa_softmax__sampling.s.ref").read().split("; @launch")[0]
        out = hdr
        out += "; @launch grid=(256,1,1) block=(256,1,1) lds=%d\n" % (self.lds_bytes)
        out += "; ---------------------------------------------------------------------------------------------\n;  loads   : nt, paced with counted vmcnt (5 KiB in flight per wave, 8 KiB for the last 30 %).\n; ---------------------------------------------------------------------------------------------\n"
        out += '.amdgcn_target "amdgcn-amd-amdhsa--gfx950"\n.text\n'
        k = self.name + "_kernel"
        out += ".globl %s\n.p2align 8\n.type %s,@function\n%s:\n" % (k, k, k)
        out += "\n".join(self.lines) + "\n"
        acc = (self.nvgpr + 3) // 4 * 4
        out += """.section .rodata,"a"
.p2align 6
.amdhsa_kernel %s
  .amdhsa_next_free_vgpr %d
  .amdhsa_next_free_sgpr %d
  .amdhsa_accum_offset %d
  .amdhsa_group_segment_fixed_size 0
  .amdhsa_kernarg_size 48
  .amdhsa_user_sgpr_count 2
  .amdhsa_user_sgpr_kernarg_segment_ptr 1
  .amdhsa_system_sgpr_workgroup_id_x 1
.end_amdhsa_kernel
""" % (k, self.nvgpr, 80 if ("stamp" in self.abl or "ampl" in self.abl) else 56, acc)
        return out

if __name__ == "__main__":
    ap = argparse.ArgumentParser()
    ap.add_argument("--w1", type=int, default=5)
    ap.add_argument("--w2", type=int, default=8)
    ap.add_argument("--w0", type=int, default=None)
    ap.add_argument("--frac", type=float, default=0.7)
    ap.add_argument("--ns", type=int, default=24)
    ap.add_argument("--abl", default="")
    ap.add_argument("--tick", type=float, default=0.96)
    ap.add_argument("--role", type=float, default=0.99)
    ap.add_argument("--pg", type=int, default=1)
    ap.add_argument("--pf", type=int, default=0)
    ap.add_argument("--mix", type=int, default=0)
    ap.add_argument("--ost", default=" sc1")
    ap.add_argument("--ldspad", type=int, default=0)
    ap.add_argument("--w3", type=int, default=0)
    ap.add_argument("--xr", type=int, default=0)
    ap.add_argument("--pat", default="w0,w1,t4,t0,t1,t2,t3,s0,s1")
    ap.add_argument("--xors", default="w0>14,s0>12,s1>13")
    ap.add_argument("--M", default="s0,s1,p0,p1,p2,p3,p4,p5")
    ap.add_argument("--masks", default="")
    ap.add_argument("--frac3", type=float, default=1.0)
    ap.add_argument("-o", default="standalone__gqa_softmax__sampling.s")
    a = ap.parse_args()
    g = Gen(W1=a.w1, W2=a.w2, frac=a.frac, NS=a.ns, abl=a.abl, tick=a.tick, role=a.role, W0=a.w0, per_gap=a.pg, pf=a.pf, mix=a.mix, ost=a.ost, ldspad=a.ldspad, W3=a.w3, frac3=a.frac3, xr=a.xr, pat=a.pat, xors=a.xors, M=a.M, masks=a.masks)
    open(a.o, "w").write(g.text())
    print("vgprs", g.nvgpr, "lds", g.lds_bytes, "lines", len(g.lines))
```

```python
import struct, sys, math, argparse

def f32hex(x):
    return "0x%08x" % struct.unpack("<I", struct.pack("<f", x))[0]

class Gen:
    def __init__(self, W1=5, W2=8, frac=0.7, NS=24, ld=" nt", abl="", tick=0.86, role=0.93, W0=None, per_gap=1, pf=0, mix=0, ost=' sc1', ldspad=0, W3=0, frac3=1.0, xr=0, pat='w0,w1,t4,t0,t1,t2,t3,s0,s1', xors='w0>14,s0>12,s1>13', M='s0,s1,p0,p1,p2,p3,p4,p5', masks='',
                 name="standalone__gqa_softmax__sampling"):
        self.W1, self.W2, self.frac, self.NS = W1, W2, frac, NS
        self.W0 = W0
        self.ld, self.abl, self.name = ld, abl, name
        self.tick, self.role = tick, role
        self.per_gap = per_gap
        self.pf = pf
        self.mix = mix
        self.ost = ost
        self.ldspad = ldspad
        self.W3, self.frac3 = W3, frac3
        self.xr = xr
        self.pat = pat.split(',')
        self.M = M.split(',')
        self.masks = dict((kv.split('=')[0], int(kv.split('=')[1], 16)) for kv in masks.split(',') if kv)
        self.xors = [x for x in xors.split(',') if x]
        self.lines = []
        self.vm = []

    def e(self, s): self.lines.append("    " + s)
    def label(self, s): self.lines.append(s + ":")
    def c(self, s): self.lines.append("    ; " + s)
    def vmem(self, text, tag):
        self.e(text); self.vm.append(tag)
    def outstanding_after(self, tag):
        return len(self.vm) - 1 - self.vm.index(tag)
    def wait_vm(self, tag):
        n = self.outstanding_after(tag)
        assert n <= 63
        if self.known >= self.vm.index(tag):
            return
        self.e("s_waitcnt vmcnt(%d)" % n)
        self.known = self.vm.index(tag)
    def wait_cnt(self, n):
        idx = len(self.vm) - 1 - n
        if idx >= 0 and self.known < idx:
            self.e("s_waitcnt vmcnt(%d)" % n)
            self.known = idx
    def landed(self, tag):
        return tag in self.vm and self.vm.index(tag) <= self.known

    def build(self):
        NW = 4
        KPW = 512
        NL = KPW // 4
        NQ = KPW // 16
        NU = KPW // 32
        NS = self.NS
        self.known = -1
        e = self.e
        vKoff, vVoff, vLane = 1, 2, 3
        vQ = 4
        vACC = 8
        vACCL = 40
        vA = 44
        vF = 48
        vM, vW0, vW1, vT = 56, 57, 58, 59
        vNM = 60
        vP0, vP1 = 61, 62
        vZ = 64
        vRem = 68
        vRemO = 80
        vOa, vMa = 86, 87
        vS = 88
        vWIN = 120
        nvgpr = vWIN + 4 * NS
        assert nvgpr <= 256
        self.nvgpr = nvgpr
        slot = lambda x: vWIN + 4 * (x % NS)
        rK, rV, rQ, rW, rO = 16, 20, 24, 28, 32
        sOffK, sOffV = 36, 37
        sC, sLO, sHI = 38, 39, 40
        sT0, sT1, sT2 = 41, 42, 43
        sWave, sTick, sRole = 44, 45, 46
        sRemOff = 47
        sUse = 50
        sOwn = 53
        sCnt = 54
        sD = 12
        LDS_ROLE = 0
        LDS_CNT = 4
        LDS_M = 64
        LDS_O = 128
        OSTR = 2064
        self.lds_bytes = max(LDS_O + NW * OSTR, self.ldspad)
        cval = math.log2(math.e) / math.sqrt(128.0)
        WSZ = 0x100000 if 'stamp' not in self.abl else 0x200000
        OOB = 0x7000000

        self.nst = 0
        def stamp():
            if 'stamp' in self.abl:
                e("s_memrealtime s[%d:%d]" % (60 + 2 * self.nst, 61 + 2 * self.nst))
                self.nst += 1
        def stamp_store():
            if 'stamp' in self.abl:
                e("s_waitcnt lgkmcnt(0)")
                e("s_mov_b64 exec, 1")
                for i in range(8):
                    e("v_mov_b32 v%d, s%d" % (16 + i, 60 + 2 * i if i < self.nst else 60))
                e("s_lshl_b32 s%d, s2, 7" % sT0)
                e("s_lshl_b32 s%d, s%d, 5" % (sT1, sWave))
                e("s_add_u32 s%d, s%d, s%d" % (sT0, sT0, sT1))
                e("s_add_u32 s%d, s%d, 0x100000" % (sT0, sT0))
                e("v_mov_b32 v24, 0")
                e("buffer_store_dwordx4 v[16:19], v24, s[%d:%d], s%d offen" % (rW, rW + 3, sT0))
                e("buffer_store_dwordx4 v[20:23], v24, s[%d:%d], s%d offen offset:16" % (rW, rW + 3, sT0))
                e("s_mov_b64 exec, -1")

        stamp()
        if 'ampl' in self.abl:
            e("s_memrealtime s[60:61]")
        e("s_load_dwordx4 s[4:7], s[0:1], 0")
        e("s_load_dwordx4 s[8:11], s[0:1], 16")
        e("s_load_dwordx4 s[12:15], s[0:1], 32")
        e("s_cmp_ge_u32 s2, 256")
        e("s_cbranch_scc1 L_end")
        if 'rendet' in self.abl:
            e("s_getreg_b32 s70, hwreg(HW_REG_XCC_ID)")
            e("s_and_b32 s70, s70, 7")
            e("s_and_b32 s71, s2, 7")
            e("s_xor_b32 s70, s70, s71")
        order = ['s0', 's1', 'p0', 'p1', 'p2', 'p3', 'p4', 'p5']
        assert sorted(self.M) == sorted(order)
        if self.M != order:
            keep = sum(1 << i for i, tok in enumerate(self.M) if order[i] == tok)
            e("s_and_b32 s3, s2, 0x%x" % keep)
            for i, tok in enumerate(self.M):
                if order[i] != tok:
                    e("s_bitcmp1_b32 s2, %d" % i)
                    e("s_cselect_b32 s%d, 0x%x, 0" % (sT0, 1 << order.index(tok)))
                    e("s_or_b32 s3, s3, s%d" % sT0)
            e("s_mov_b32 s2, s3")
        e("v_and_b32 v%d, 63, v0" % vLane)
        e("v_lshrrev_b32 v%d, 6, v0" % vT)
        e("v_and_b32 v%d, 3, v0" % vW1)
        e("v_bfe_u32 v%d, v0, 2, 2" % vW0)
        e("v_bfe_u32 v%d, v0, 4, 2" % vNM)
        e("v_lshlrev_b32 v%d, 6, v%d" % (vNM, vNM))
        e("v_readfirstlane_b32 s%d, v%d" % (sWave, vT))
        e("v_lshl_add_u32 v%d, v%d, 4, v%d" % (vKoff, vW1, vNM))
        e("v_lshl_add_u32 v%d, v%d, 8, v%d" % (vKoff, vW0, vKoff))
        e("v_lshl_add_u32 v%d, v%d, 8, v%d" % (vM, vW1, vNM))
        e("v_lshl_add_u32 v%d, v%d, 4, v%d" % (vM, vW0, vM))
        e("v_lshlrev_b32 v%d, 4, v%d" % (vVoff, vLane))
        pos = {tok: 12 + i for i, tok in enumerate(self.pat)}
        contrib = {"w0": 1 << pos["w0"], "w1": 1 << pos["w1"], "s0": 1 << pos["s0"], "s1": 1 << pos["s1"]}
        for x_ in self.xors:
            a_, b_ = x_.split(">")
            contrib[a_] ^= 1 << int(b_)
        tb = [1 << pos["t%d" % i] for i in range(5)]
        if self.masks:
            contrib = {k_: self.masks[k_] for k_ in ("w0", "w1", "s0", "s1")}
            tb = [self.masks["t%d" % i] for i in range(5)]
        sBase = 55
        e("s_lshr_b32 s%d, s2, 2" % sBase)
        e("s_lshl_b32 s%d, s%d, 21" % (sBase, sBase))
        for tok, src, b_ in (("s0", 2, 0), ("s1", 2, 1), ("w0", sWave, 0), ("w1", sWave, 1)):
            e("s_bitcmp1_b32 s%d, %d" % (src, b_))
            e("s_cselect_b32 s%d, 0x%x, 0" % (sT0, contrib[tok]))
            e("s_xor_b32 s%d, s%d, s%d" % (sBase, sBase, sT0))
        def tmask(t_):
            v_ = 0
            for i in range(5):
                if (t_ >> i) & 1:
                    v_ ^= tb[i]
            return v_
        seen = set()
        for w_ in range(4):
            for s_ in range(4):
                for t_ in range(32):
                    a_ = tmask(t_)
                    for tok, bit in (("w0", w_ & 1), ("w1", w_ >> 1), ("s0", s_ & 1), ("s1", s_ >> 1)):
                        if bit:
                            a_ ^= contrib[tok]
                    seen.add(a_)
        assert len(seen) == 512 and max(seen) < (1 << 21) and min(x_ & 0xfff for x_ in seen) == 0
        e("s_lshr_b32 s%d, s2, 2" % sT1)
        e("s_lshl_b32 s%d, s%d, 10" % (sT2, sT1))
        e("s_mov_b32 s%d, 0x8000000" % (rK + 2))
        e("s_mov_b32 s%d, 0x20000" % (rK + 3))
        e("s_mov_b32 s%d, 0x10000" % (rQ + 2))
        e("s_mov_b32 s%d, 0x20000" % (rQ + 3))
        e("s_waitcnt lgkmcnt(0)")
        e("s_mov_b32 s%d, s6" % rK)
        e("s_and_b32 s%d, s7, 0xffff" % (rK + 1))
        e("s_mov_b32 s%d, s4" % rQ)
        e("s_and_b32 s%d, s5, 0xffff" % (rQ + 1))
        gstride = 4096 * NW
        st = {"k": 0, "v": 0}
        def issue(x):
            r = slot(x)
            if x < NL:
                grp, j = divmod(x, 4)
                if j == 0 and grp:
                    e("s_xor_b32 s%d, s%d, 0x%x" % (sOffK, sBase, tmask(grp)))
                so = sOffK if grp else sBase
                self.vmem("buffer_load_dwordx4 v[%d:%d], v%d, s[%d:%d], s%d offen offset:%d%s" %
                          (r, r + 3, vKoff, rK, rK + 3, so, j * 1024, self.ld), ("ld", x))
            else:
                grp, j = divmod(x - NL, 4)
                if j == 0 and grp:
                    e("s_xor_b32 s%d, s%d, 0x%x" % (sOffV, sBase, tmask(grp)))
                so = sOffV if grp else sBase
                self.vmem("buffer_load_dwordx4 v[%d:%d], v%d, s[%d:%d], s%d offen offset:%d%s" %
                          (r, r + 3, vVoff, rV, rV + 3, so, j * 1024, self.ld), ("ld", x))
        def window(x):
            if self.W0 is not None and x < self.W0:
                return self.W0
            if x < self.frac * 2 * NL:
                return self.W1 + (1 if (self.mix and x > 8 and x % self.mix == 0) else 0)
            if self.W3 and x >= self.frac3 * 2 * NL:
                return self.W3
            return self.W2

        bundles = []
        D = vACC
        def mkA(q):
            def f():
                for j in range(4):
                    r = slot(4 * q + j)
                    e("v_mfma_f32_16x16x32_bf16 v[%d:%d], v[%d:%d], v[%d:%d], 0" %
                      (D + 4 * j, D + 4 * j + 3, r, r + 3, vQ, vQ + 3))
                e("s_nop 4")
            return f
        def mkB(q):
            def f():
                d = lambda j, r: D + 4 * j + r
                rot = "row_ror:12"
                e("s_nop 2")
                for (w, j0) in ((vW0, 0), (vW1, 2)):
                    e("v_add_f32_dpp v%d, v%d, v%d %s row_mask:0xf bank_mask:0x1" % (w, d(j0, 1), d(j0, 0), rot))
                    e("v_add_f32_dpp v%d, v%d, v%d %s row_mask:0xf bank_mask:0x4" % (w, d(j0, 3), d(j0, 2), rot))
                    e("v_add_f32_dpp v%d, v%d, v%d %s row_mask:0xf bank_mask:0x2" % (w, d(j0 + 1, 2), d(j0 + 1, 1), rot))
                    e("v_add_f32_dpp v%d, v%d, v%d %s row_mask:0xf bank_mask:0x8" % (w, d(j0 + 1, 0), d(j0 + 1, 3), rot))
                e("v_add_f32_dpp v%d, v%d, v%d row_ror:8 row_mask:0xf bank_mask:0x3" % (vS + q, vW0, vW0))
                e("s_nop 0")
                e("v_add_f32_dpp v%d, v%d, v%d row_ror:8 row_mask:0xf bank_mask:0xc" % (vS + q, vW1, vW1))
                if q == 0:
                    e("v_mov_b32 v%d, v%d" % (vM, vS))
                else:
                    e("v_max_f32 v%d, v%d, v%d" % (vM, vM, vS + q))
            return f
        def xlane_max(v, t):
            e("s_nop 1")
            e("v_max_f32_dpp v%d, v%d, v%d row_ror:4 row_mask:0xf bank_mask:0xf" % (v, v, v))
            e("s_nop 1")
            e("v_max_f32_dpp v%d, v%d, v%d row_ror:8 row_mask:0xf bank_mask:0xf" % (v, v, v))
            e("v_mov_b32 v%d, v%d" % (t, v))
            e("s_nop 1")
            e("v_permlane16_swap_b32 v%d, v%d" % (v, t))
            e("v_max_f32 v%d, v%d, v%d" % (v, v, t))
            e("v_mov_b32 v%d, v%d" % (t, v))
            e("s_nop 1")
            e("v_permlane32_swap_b32 v%d, v%d" % (v, t))
            e("v_max_f32 v%d, v%d, v%d" % (v, v, t))
        def trans():
            assert self.landed(("clr", 3))
            stamp()
            xlane_max(vM, vW0)
            e("v_and_b32 v%d, 15, v%d" % (vW1, vLane))
            e("v_lshlrev_b32 v%d, 2, v%d" % (vW1, vW1))
            e("s_lshl_b32 s%d, s%d, 4" % (sT0, sWave))
            e("v_add_u32 v%d, s%d, v%d" % (vW0, sT0, vW1))
            e("v_mov_b32 v%d, 1" % vT)
            e("s_mov_b64 exec, 0xf")
            e("ds_write_b32 v%d, v%d offset:%d" % (vW0, vM, LDS_M))
            e("s_mov_b64 exec, 1")
            e("ds_add_u32 v%d, v%d offset:%d" % (vZ, vT, LDS_CNT))
            e("s_mov_b64 exec, -1")
            for r in range(4):
                e("v_mov_b32 v%d, 0x3f803f80" % (vQ + r))
        def trans2():
            self.label("L_wmax")
            e("ds_read_b32 v%d, v%d offset:%d" % (vT, vZ, LDS_CNT))
            e("ds_read_b32 v%d, v%d offset:%d" % (vM, vW1, LDS_M))
            e("s_waitcnt lgkmcnt(0)")
            e("v_readfirstlane_b32 s%d, v%d" % (sT0, vT))
            e("s_cmp_lg_u32 s%d, 4" % sT0)
            e("s_cbranch_scc1 L_wmax")
            e("v_max_f32_dpp v%d, v%d, v%d row_ror:4 row_mask:0xf bank_mask:0xf" % (vM, vM, vM))
            e("s_nop 1")
            e("v_max_f32_dpp v%d, v%d, v%d row_ror:8 row_mask:0xf bank_mask:0xf" % (vM, vM, vM))
            e("v_mul_f32 v%d, s%d, v%d" % (vNM, sC, vM))
        def mkP(u):
            def f():
                e("v_fma_f32 v%d, v%d, s%d, -v%d" % (vP0, vS + 2 * u, sC, vNM))
                e("v_fma_f32 v%d, v%d, s%d, -v%d" % (vP1, vS + 2 * u + 1, sC, vNM))
                e("v_exp_f32 v%d, v%d" % (vP0, vP0))
                e("v_exp_f32 v%d, v%d" % (vP1, vP1))
                e("s_nop 0")
                e("v_cvt_pk_bf16_f32 v%d, v%d, v%d" % (vA, vP0, vP1))
                e("s_nop 1")
                e("v_mov_b32_dpp v%d, v%d row_ror:12 row_mask:0xf bank_mask:0xf" % (vA + 1, vA))
                e("v_mov_b32_dpp v%d, v%d row_ror:8 row_mask:0xf bank_mask:0xf" % (vA + 2, vA))
                e("v_mov_b32_dpp v%d, v%d row_ror:4 row_mask:0xf bank_mask:0xf" % (vA + 3, vA))
                e("s_nop 1")
                cc = "0" if u == 0 else "v[%d:%d]" % (vACCL, vACCL + 3)
                e("v_mfma_f32_16x16x32_bf16 v[%d:%d], v[%d:%d], v[%d:%d], %s" % (vACCL, vACCL + 3, vA, vA + 3, vQ, vQ + 3, cc))
            return f
        def mkC(u, half):
            base = NL + 8 * u
            def perms(i):
                F = vF + 4 * (i & 1)
                sel = sHI if (i & 1) else sLO
                for p in range(4):
                    e("v_perm_b32 v%d, v%d, v%d, s%d" % (F + p, slot(base + p + 4) + (i >> 1), slot(base + p) + (i >> 1), sel))
            def mf(i):
                F = vF + 4 * (i & 1)
                a = vACC + 4 * i
                cc = "0" if u == 0 else "v[%d:%d]" % (a, a + 3)
                e("v_mfma_f32_16x16x32_bf16 v[%d:%d], v[%d:%d], v[%d:%d], %s" % (a, a + 3, vA, vA + 3, F, F + 3, cc))
            def f():
                i0 = 4 * half
                perms(i0); perms(i0 + 1); mf(i0); perms(i0 + 2); mf(i0 + 1); perms(i0 + 3); mf(i0 + 2)
                e("s_nop 0")
                mf(i0 + 3)
            return f
        for q in range(NQ):
            bundles.append(("A%d" % q, ("ld", 4 * q + 3), list(range(4 * q, 4 * q + 4)), mkA(q)))
            bundles.append(("B%d" % q, None, [], mkB(q)))
        bundles.append(("T", None, [], trans))
        bundles.append(("T2", ("ld", NL + 12), [], trans2))
        for u in range(NU):
            bundles.append(("P%d" % u, None, [], mkP(u)))
            bundles.append(("C%d_0" % u, ("ld", NL + 8 * u + 7), [], mkC(u, 0)))
            bundles.append(("C%d_1" % u, None, list(range(NL + 8 * u, NL + 8 * u + 8)), mkC(u, 1)))

        def ev_setup():
            e("s_mov_b32 s%d, s8" % rV)
            e("s_and_b32 s%d, s9, 0xffff" % (rV + 1))
            e("s_mov_b32 s%d, 0x8000000" % (rV + 2))
            e("s_mov_b32 s%d, 0x20000" % (rV + 3))
            e("s_mov_b32 s%d, %s" % (sC, f32hex(cval)))
            e("s_mov_b32 s%d, 0x05040100" % sLO)
            e("s_mov_b32 s%d, 0x07060302" % sHI)
            e("s_mov_b32 s%d, s14" % rW)
            e("s_and_b32 s%d, s15, 0xffff" % (rW + 1))
            e("s_mov_b32 s%d, 0x%x" % (rW + 2, WSZ))
            e("s_mov_b32 s%d, 0x20000" % (rW + 3))
            e("s_mov_b32 s%d, s10" % rO)
            e("s_and_b32 s%d, s11, 0xffff" % (rO + 1))
            e("s_mov_b32 s%d, 0x10000" % (rO + 2))
            e("s_mov_b32 s%d, 0x20000" % (rO + 3))
            e("s_lshl_b32 s%d, s%d, 2" % (sT1, sT1))
            e("s_add_u32 s12, s12, s%d" % sT1)
            e("s_addc_u32 s13, s13, 0")
            e("s_lshl_b32 s%d, s%d, 10" % (sT0, sWave))
            e("s_lshl_b32 s%d, s2, 12" % sOwn)
            e("s_add_u32 s%d, s%d, s%d" % (sOwn, sOwn, sT0))
            for k in range(1, 4):
                e("s_xor_b32 s%d, s%d, %d" % (sRemOff + k - 1, sOwn, k << 12))
            e("v_and_b32 v%d, 3, v0" % vOa)
            e("v_lshlrev_b32 v%d, 9, v%d" % (vOa, vOa))
            e("v_bfe_u32 v%d, v0, 2, 4" % vMa)
            e("v_lshl_add_u32 v%d, v%d, 4, v%d" % (vOa, vMa, vOa))
            e("s_lshl_b32 s%d, s%d, 2" % (sT0, sWave))
            e("v_add_u32 v%d, s%d, v%d" % (vOa, sT0, vOa))
            e("v_mov_b32 v%d, s%d" % (vMa, sT0))
            e("s_lshl_b32 s%d, s%d, 8" % (sT0, sWave))
            e("s_add_u32 s%d, s%d, s%d" % (sT2, sT2, sT0))
            for r in range(4):
                e("v_mov_b32 v%d, 0" % (vZ + r))
            if 'noclr' in self.abl:
                e("s_mov_b32 s%d, 0x%x" % (sT0, OOB))
            else:
                e("s_mov_b32 s%d, s%d" % (sT0, sOwn))
            self.vmem("buffer_store_dwordx4 v[%d:%d], v%d, s[%d:%d], s%d offen%s" %
                      (vZ, vZ + 3, vVoff, rW, rW + 3, sT0, " sc1 nt" if 'clrnt' in self.abl else (" sc0 sc1" if 'clrsys' in self.abl else " sc1")), ("clr", 3))
            e("ds_write_b64 v%d, v[%d:%d] offset:%d" % (vZ, vZ, vZ + 1, LDS_ROLE))
            e("s_waitcnt lgkmcnt(0)")
            e("s_barrier")
        def ev_ticket():
            if 'notick' in self.abl:
                e('s_mov_b32 s%d, 0' % sTick)
                return
            assert self.landed(("clr", 3))
            e("s_cmp_lg_u32 s%d, 0" % sWave)
            e("s_cbranch_scc1 L_notick")
            e("s_mov_b32 s%d, 1" % sTick)
            e("s_atomic_add s%d, s[12:13], 0 glc" % sTick)
            self.label("L_notick")
        def ev_role():
            e("s_cmp_lg_u32 s%d, 0" % sWave)
            e("s_cbranch_scc1 L_norole")
            e("s_waitcnt lgkmcnt(0)")
            e("s_add_u32 s%d, s%d, 1" % (sTick, sTick))
            e("v_mov_b32 v%d, s%d" % (vT, sTick))
            e("ds_write_b32 v%d, v%d offset:%d" % (vZ, vT, LDS_ROLE))
            self.label("L_norole")
        def rem_load(k, so, track=True):
            t2 = "buffer_load_dwordx4 v[%d:%d], v%d, s[%d:%d], s%d offen%s" % (vRem + 4 * k, vRem + 4 * k + 3, vVoff, rW, rW + 3, so, " sc0 sc1" if 'ldsys' in self.abl else " sc1")
            if track:
                self.vmem(t2, ("rem", k, len(self.vm)))
            else:
                e(t2)
        def rem_loads():
            for k in range(3):
                rem_load(k, sUse + k)
        def ev_prefetch_a():
            e("ds_read_b32 v%d, v%d offset:%d" % (vT, vZ, LDS_ROLE))
        def ev_prefetch_b():
            e("s_waitcnt lgkmcnt(0)")
            e("v_readfirstlane_b32 s%d, v%d" % (sRole, vT))
            e("s_cmp_eq_u32 s%d, 4" % sRole)
            for k in range(3):
                e("s_cselect_b32 s%d, s%d, 0x%x" % (sUse + k, sRemOff + k, OOB))
            rem_loads()
        TOT = 2 * NL
        events = {int(self.tick * TOT): ev_ticket, int(self.role * TOT): ev_role}

        self.vmem("buffer_load_dwordx4 v[%d:%d], v%d, s[%d:%d], s%d offen" % (vQ, vQ + 3, vM, rQ, rQ + 3, sT2), "q")
        freed = set()
        bi = 0
        def emit_bundle(force):
            nonlocal bi
            name, need, frees, fn = bundles[bi]
            if need is not None and not self.landed(need):
                if not force:
                    return False
                self.wait_vm(need)
            self.c(name)
            if not ('nocomp' in self.abl and name[0] != 'T'):
                fn()
            freed.update(frees)
            bi += 1
            return True
        first = window(0)
        for x in range(TOT):
            while x >= NS and (x - NS) not in freed:
                emit_bundle(True)
            w = window(x)
            if x - w >= 0:
                self.wait_vm(("ld", x - w))
                if x - w == 3:
                    stamp()
            issue(x)
            if x == first - 1:
                ev_setup()
            if x in events:
                events[x]()
            n = 0
            while bi < len(bundles) and n < self.per_gap and emit_bundle(False):
                n += 1
        while bi < len(bundles):
            if bi == len(bundles) - 2:
                self.wait_vm(bundles[bi][1])
                ev_prefetch_a()
            emit_bundle(True)
            if bi == len(bundles) - self.pf:
                ev_prefetch_b()
        stamp()
        if 'noepi' in self.abl:
            e('s_waitcnt vmcnt(0)')
            e('s_endpgm')
        e("s_mul_i32 s%d, s%d, %d" % (sT0, sWave, OSTR))
        e("v_add_u32 v%d, s%d, v%d" % (vW0, sT0, vVoff))
        X = 44
        e("v_readlane_b32 s%d, v%d, s%d" % (sT1, vNM, sWave))
        e("s_mov_b64 exec, 1")
        e("ds_write_b128 v%d, v[%d:%d] offset:%d" % (vW0, vACCL, vACCL + 3, LDS_O + 2048))
        e("s_mov_b64 exec, 0xffff")
        for i in range(8):
            if i == 4:
                e("s_nop 1")
            e("ds_write_b128 v%d, v[%d:%d] offset:%d" % (vW0, vACC + 4 * i, vACC + 4 * i + 3, LDS_O + i * 256))
        e("s_mov_b64 exec, -1")
        e("v_mov_b32 v%d, s%d" % (X + 2, sT1))
        e("v_lshlrev_b32 v%d, 2, v%d" % (vW1, vLane))
        e("s_waitcnt lgkmcnt(0)")
        e("s_barrier")
        stamp()
        R = vS
        ll = lambda w: R + w
        oo = lambda w: R + 8 + 2 * w
        for w in range(4):
            for h in range(2):
                e("ds_read_b32 v%d, v%d offset:%d" % (oo(w) + h, vOa, LDS_O + w * OSTR + 256 * h))
        for w in range(4):
            e("ds_read_b32 v%d, v%d offset:%d" % (ll(w), vMa, LDS_O + w * OSTR + 2048))
        e("ds_read_b32 v%d, v%d offset:%d" % (vT, vZ, LDS_ROLE))
        e("s_waitcnt lgkmcnt(5)")
        for h in range(2):
            e("v_add_f32 v%d, v%d, v%d" % (X + h, oo(0) + h, oo(1) + h))
            e("v_add_f32 v%d, v%d, v%d" % (oo(2) + h, oo(2) + h, oo(3) + h))
        for h in range(2):
            e("v_add_f32 v%d, v%d, v%d" % (X + h, X + h, oo(2) + h))
        e("s_waitcnt lgkmcnt(0)")
        e("v_readfirstlane_b32 s%d, v%d" % (sRole, vT))
        e("v_add_f32 v%d, v%d, v%d" % (X + 3, ll(0), ll(1)))
        e("v_add_f32 v%d, v%d, v%d" % (ll(2), ll(2), ll(3)))
        e("v_add_f32 v%d, v%d, v%d" % (X + 3, X + 3, ll(2)))
        if 'nopub' in self.abl:
            e('s_endpgm')
        for r in range(4):
            e("v_or_b32 v%d, 1, v%d" % (X + r, X + r))
        e("s_cmp_eq_u32 s%d, 4" % sRole)
        e("s_cbranch_scc1 L_comb")
        e("buffer_store_dwordx4 v[%d:%d], v%d, s[%d:%d], s%d offen%s" % (X, X + 3, vVoff, rW, rW + 3, sOwn, " sc0 sc1" if 'pubsys' in self.abl else " sc1"))
        if 'stamp' in self.abl:
            sv = self.nst
            stamp(); stamp()
            stamp_store()
            self.nst = sv
        e("s_endpgm")
        self.label("L_comb")
        e("s_mov_b32 s%d, 0" % sCnt)
        T3 = 16
        self.label("L_chk")
        e("s_waitcnt vmcnt(0)")
        for k in range(3):
            e("v_and_b32 v%d, v%d, v%d" % (T3 + k, vRem + 4 * k, vRem + 4 * k + 1))
        for r in range(2, 4):
            for k in range(3):
                e("v_and_b32 v%d, v%d, v%d" % (T3 + k, T3 + k, vRem + 4 * k + r))
        e("v_and_b32 v%d, v%d, v%d" % (vT, T3, T3 + 1))
        e("v_and_b32 v%d, v%d, v%d" % (vT, vT, T3 + 2))
        e("v_and_b32 v%d, 1, v%d" % (vT, vT))
        e("v_cmp_ne_u32 vcc, 1, v%d" % vT)
        e("s_cbranch_vccz L_ok")
        if 'nopoll' in self.abl:
            e("s_branch L_ok")
        e("s_add_u32 s%d, s%d, 1" % (sCnt, sCnt))
        e("s_cmp_gt_u32 s%d, 0x100000" % sCnt)
        e("s_cbranch_scc1 L_ok")
        for k in range(3):
            e("v_and_b32 v%d, 1, v%d" % (vT, T3 + k))
            e("v_cmp_ne_u32 vcc, 1, v%d" % vT)
            e("s_cbranch_vccz L_skip%d" % k)
            rem_load(k, sRemOff + k, track=False)
            self.label("L_skip%d" % k)
        e("s_branch L_chk")
        self.label("L_ok")
        stamp()
        Rs = [X] + [vRem + 4 * k for k in range(3)]
        Mx, Ls, Oa = 16, 18, 20
        e("v_max3_f32 v%d, v%d, v%d, v%d" % (Mx, Rs[0] + 2, Rs[1] + 2, Rs[2] + 2))
        e("v_max_f32 v%d, v%d, v%d" % (Mx, Mx, Rs[3] + 2))
        for k in range(4):
            e("v_sub_f32 v%d, v%d, v%d" % (Rs[k] + 2, Rs[k] + 2, Mx))
        for k in range(4):
            e("v_exp_f32 v%d, v%d" % (Rs[k] + 2, Rs[k] + 2))
        for k in range(4):
            e("v_mul_f32 v%d, v%d, v%d" % (Rs[k] + 3, Rs[k] + 2, Rs[k] + 3))
        for k in range(4):
            for h in range(2):
                e("v_mul_f32 v%d, v%d, v%d" % (Rs[k] + h, Rs[k] + 2, Rs[k] + h))
        e("v_add_f32 v%d, v%d, v%d" % (Ls, Rs[0] + 3, Rs[1] + 3))
        e("v_add_f32 v%d, v%d, v%d" % (Ls + 1, Rs[2] + 3, Rs[3] + 3))
        e("v_add_f32 v%d, v%d, v%d" % (Ls, Ls, Ls + 1))
        e("v_rcp_f32 v%d, v%d" % (Ls, Ls))
        for h in range(2):
            e("v_add_f32 v%d, v%d, v%d" % (Oa + h, Rs[0] + h, Rs[1] + h))
            e("v_add_f32 v%d, v%d, v%d" % (Rs[2] + h, Rs[2] + h, Rs[3] + h))
        for h in range(2):
            e("v_add_f32 v%d, v%d, v%d" % (Oa + h, Oa + h, Rs[2] + h))
        for h in range(2):
            e("v_mul_f32 v%d, v%d, v%d" % (Oa + h, Oa + h, Ls))
        e("v_cvt_pk_bf16_f32 v%d, v%d, v%d" % (Oa, Oa, Oa + 1))
        if 'noout' not in self.abl:
            e("buffer_store_dword v%d, v%d, s[%d:%d], s%d offen%s" % (Oa, vW1, rO, rO + 3, sT2, self.ost))
        if 'stamp' in self.abl:
            e("s_waitcnt vmcnt(0)")
            stamp()
            e("s_mov_b32 s%d, s%d" % (60 + 2 * 7, sCnt))
            self.nst = 8
            stamp_store()
        if 'ampl' in self.abl:
            e("s_waitcnt vmcnt(0)")
            e("s_memrealtime s[62:63]")
            e("s_waitcnt lgkmcnt(0)")
            e("s_sub_u32 s64, s62, s60")
            e("s_max_u32 s64, s64, 3400")
            e("s_sub_u32 s64, s64, 3400")
            e("s_min_u32 s64, s64, 5000")
            e("s_lshl_b32 s64, s64, 3")
            if 'rendet' in self.abl:
                e("s_cmp_eq_u32 s70, 0")
                e("s_cselect_b32 s64, 0, 3000")
            self.label("L_amp")
            e("s_memrealtime s[66:67]")
            e("s_waitcnt lgkmcnt(0)")
            e("s_sub_u32 s65, s66, s62")
            e("s_cmp_lt_u32 s65, s64")
            e("s_cbranch_scc1 L_amp")
        self.label("L_end")
        e("s_endpgm")

    def text(self):
        self.build()
        hdr = open("standalone__gqa_softmax__sampling.s.ref").read().split("; @launch")[0]
        out = hdr
        out += "; @launch grid=(256,1,1) block=(256,1,1) lds=%d\n" % (self.lds_bytes)
        out += "; ---------------------------------------------------------------------------------------------\n;  loads   : nt, paced with counted vmcnt (5 KiB in flight per wave, 8 KiB for the last 30 %).\n; ---------------------------------------------------------------------------------------------\n"
        out += '.amdgcn_target "amdgcn-amd-amdhsa--gfx950"\n.text\n'
        k = self.name + "_kernel"
        out += ".globl %s\n.p2align 8\n.type %s,@function\n%s:\n" % (k, k, k)
        out += "\n".join(self.lines) + "\n"
        acc = (self.nvgpr + 3) // 4 * 4
        out += """.section .rodata,"a"
.p2align 6
.amdhsa_kernel %s
  .amdhsa_next_free_vgpr %d
  .amdhsa_next_free_sgpr %d
  .amdhsa_accum_offset %d
  .amdhsa_group_segment_fixed_size 0
  .amdhsa_kernarg_size 48
  .amdhsa_user_sgpr_count 2
  .amdhsa_user_sgpr_kernarg_segment_ptr 1
  .amdhsa_system_sgpr_workgroup_id_x 1
.end_amdhsa_kernel
""" % (k, self.nvgpr, 80 if ("stamp" in self.abl or "ampl" in self.abl) else 56, acc)
        return out

if __name__ == "__main__":
    ap = argparse.ArgumentParser()
    ap.add_argument("--w1", type=int, default=5)
    ap.add_argument("--w2", type=int, default=8)
    ap.add_argument("--w0", type=int, default=None)
    ap.add_argument("--frac", type=float, default=0.7)
    ap.add_argument("--ns", type=int, default=24)
    ap.add_argument("--abl", default="")
    ap.add_argument("--tick", type=float, default=0.96)
    ap.add_argument("--role", type=float, default=0.99)
    ap.add_argument("--pg", type=int, default=1)
    ap.add_argument("--pf", type=int, default=0)
    ap.add_argument("--mix", type=int, default=0)
    ap.add_argument("--ost", default=" sc1")
    ap.add_argument("--ldspad", type=int, default=0)
    ap.add_argument("--w3", type=int, default=0)
    ap.add_argument("--xr", type=int, default=0)
    ap.add_argument("--pat", default="w0,w1,t4,t0,t1,t2,t3,s0,s1")
    ap.add_argument("--xors", default="w0>14,s0>12,s1>13")
    ap.add_argument("--M", default="s0,s1,p0,p1,p2,p3,p4,p5")
    ap.add_argument("--masks", default="")
    ap.add_argument("--ld", default=" nt")
    ap.add_argument("--frac3", type=float, default=1.0)
    ap.add_argument("-o", default="standalone__gqa_softmax__sampling.s")
    a = ap.parse_args()
    g = Gen(W1=a.w1, W2=a.w2, frac=a.frac, NS=a.ns, abl=a.abl, tick=a.tick, role=a.role, W0=a.w0, per_gap=a.pg, pf=a.pf, mix=a.mix, ost=a.ost, ldspad=a.ldspad, W3=a.w3, frac3=a.frac3, xr=a.xr, pat=a.pat, xors=a.xors, M=a.M, masks=a.masks, ld=a.ld)
    open(a.o, "w").write(g.text())
    print("vgprs", g.nvgpr, "lds", g.lds_bytes, "lines", len(g.lines))
```

```python
import sys
mode = int(sys.argv[1]); outf = sys.argv[2]
base = open("final.s").read()
L = []
e = lambda s: L.append("    " + s)
e("s_cmp_ge_u32 s2, 1")
e("s_cbranch_scc1 P_end")
e("s_memrealtime s[80:81]")
e("s_load_dwordx4 s[4:7], s[0:1], 0")
e("s_load_dwordx4 s[8:11], s[0:1], 16")
e("s_mov_b32 s14, 0x8000000")
e("s_mov_b32 s15, 0x20000")
e("s_waitcnt lgkmcnt(0)")
e("s_mov_b64 exec, 1")
e("v_mov_b32 v1, 0")
for t in range(2):
    e("s_mov_b32 s12, s%d" % (6 + 2 * t))
    e("s_and_b32 s13, s%d, 0xffff" % (7 + 2 * t))
    for i in range(4):
        e("s_mov_b32 s%d, 0" % (60 + 4 * t + i))
    e("s_mov_b32 s43, 0")
    L.append("P_page%d:" % t)
    for ci, c in enumerate((0, 2, 4, 6)):
        e("s_mov_b32 s%d, 0x7fffffff" % (44 + ci))
        for rep in range(3):
            e("s_lshl_b32 s41, s43, 21")
            e("s_add_u32 s41, s41, %d" % (c * 4096 + rep * 32768))
            e("s_memtime s[32:33]")
            e("s_waitcnt lgkmcnt(0)")
            for r in range(2):
                e("buffer_load_dword v2, v1, s[12:15], s41 offen offset:%d nt" % (256 * r + 128))
                e("s_waitcnt vmcnt(0)")
            e("s_memtime s[34:35]")
            e("s_waitcnt lgkmcnt(0)")
            e("s_sub_u32 s36, s34, s32")
            e("s_min_u32 s%d, s%d, s36" % (44 + ci, 44 + ci))
    e("s_add_u32 s52, s44, s46"); e("s_add_u32 s54, s45, s47")
    e("s_cmp_gt_u32 s52, s54")
    e("s_cselect_b32 s55, 1, 0")
    e("s_cselect_b32 s44, s45, s44"); e("s_cselect_b32 s46, s47, s46")
    e("s_cmp_gt_u32 s44, s46")
    e("s_cselect_b32 s56, 1, 0")
    for k, sr in enumerate((55, 56)):
        e("s_mov_b32 s58, s%d" % sr)
        e("s_mov_b32 s59, 0")
        e("s_lshl_b64 s[58:59], s[58:59], s43")
        d = 60 + 4 * t + 2 * k
        e("s_or_b64 s[%d:%d], s[%d:%d], s[58:59]" % (d, d + 1, d, d + 1))
    e("s_add_u32 s43, s43, 1")
    e("s_cmp_lt_u32 s43, 64")
    e("s_cbranch_scc1 P_page%d" % t)
    d = 60 + 4 * t
    e("s_xor_b32 s%d, s%d, 0xaaaaaaaa" % (d, d)); e("s_xor_b32 s%d, s%d, 0xaaaaaaaa" % (d + 1, d + 1))
    if mode == 0:
        e("s_not_b32 s%d, s%d" % (d + 3, d + 3))
        for k in range(2):
            e("s_bcnt1_i32_b64 s52, s[%d:%d]" % (d + 2 * k, d + 2 * k + 1))
            e("s_sub_u32 s53, 64, s52")
            e("s_min_u32 s%d, s52, s53" % (70 + 2 * t + k))
        e("s_add_u32 s%d, s%d, s%d" % (74 + t, 70 + 2 * t, 71 + 2 * t))
        e("s_lshr_b32 s%d, s%d, 1" % (74 + t, 74 + t))
        e("s_min_u32 s%d, s%d, 15" % (74 + t, 74 + t))
    else:
        e("s_bcnt1_i32_b32 s%d, s%d" % (74 + t, d + 2))
if mode == 0:
    e("s_lshl_b32 s75, s75, 4")
    e("s_add_u32 s74, s74, s75")
else:
    e("s_mul_i32 s75, s75, 33")
    e("s_add_u32 s74, s74, s75")
e("s_mul_i32 s74, s74, %d" % (500 if mode == 0 else 300))
e("s_add_u32 s74, s74, 150000")
L.append("P_spin:")
e("s_memrealtime s[82:83]")
e("s_waitcnt lgkmcnt(0)")
e("s_sub_u32 s84, s82, s80")
e("s_cmp_lt_u32 s84, s74")
e("s_cbranch_scc1 P_spin")
L.append("P_end:")
e("s_endpgm")
k = "probe_kernel"
code = ".globl %s\n.p2align 8\n.type %s,@function\n%s:\n" % (k, k, k) + "\n".join(L) + "\n"
desc = """.p2align 6
.amdhsa_kernel %s
  .amdhsa_next_free_vgpr 16
  .amdhsa_next_free_sgpr 90
  .amdhsa_accum_offset 16
  .amdhsa_group_segment_fixed_size 0
  .amdhsa_kernarg_size 48
  .amdhsa_user_sgpr_count 2
  .amdhsa_user_sgpr_kernarg_segment_ptr 1
  .amdhsa_system_sgpr_workgroup_id_x 1
.end_amdhsa_kernel
""" % k
out = base.replace("; @launch grid=(256,1,1) block=(256,1,1) lds=8384\n",
  "; @launch kernel=standalone__gqa_softmax__sampling_kernel grid=(256,1,1) block=(256,1,1) lds=8384\n; @launch kernel=probe_kernel grid=(1,1,1) block=(64,1,1) lds=0\n")
out = out.replace('.section .rodata,"a"\n', code + '.section .rodata,"a"\n') + desc
open(outf, "w").write(out)
```

```python
import struct, sys, math, argparse

def f32hex(x):
    return "0x%08x" % struct.unpack("<I", struct.pack("<f", x))[0]

class Gen:
    def __init__(self, W1=5, W2=8, frac=0.7, NS=24, ld=" nt", abl="", tick=0.86, role=0.93, W0=None, per_gap=1, pf=0, mix=0, ost=' sc1', ldspad=0, W3=0, frac3=1.0, xr=0, pat='w0,w1,t4,t0,t1,t2,t3,s0,s1', xors='w0>14,s0>12,s1>13', M='s0,s1,p0,p1,p2,p3,p4,p5', masks='', tw='',
                 name="standalone__gqa_softmax__sampling"):
        self.W1, self.W2, self.frac, self.NS = W1, W2, frac, NS
        self.W0 = W0
        self.ld, self.abl, self.name = ld, abl, name
        self.tick, self.role = tick, role
        self.per_gap = per_gap
        self.pf = pf
        self.mix = mix
        self.ost = ost
        self.ldspad = ldspad
        self.W3, self.frac3 = W3, frac3
        self.xr = xr
        self.pat = pat.split(',')
        self.M = M.split(',')
        self.tw = [int(x) for x in tw.split(',')] if tw else None
        self.masks = dict((kv.split('=')[0], int(kv.split('=')[1], 16)) for kv in masks.split(',') if kv)
        self.xors = [x for x in xors.split(',') if x]
        self.lines = []
        self.vm = []

    def e(self, s): self.lines.append("    " + s)
    def label(self, s): self.lines.append(s + ":")
    def c(self, s): self.lines.append("    ; " + s)
    def vmem(self, text, tag):
        self.e(text); self.vm.append(tag)
    def outstanding_after(self, tag):
        return len(self.vm) - 1 - self.vm.index(tag)
    def wait_vm(self, tag):
        n = self.outstanding_after(tag)
        assert n <= 63
        if self.known >= self.vm.index(tag):
            return
        self.e("s_waitcnt vmcnt(%d)" % n)
        self.known = self.vm.index(tag)
    def wait_cnt(self, n):
        idx = len(self.vm) - 1 - n
        if idx >= 0 and self.known < idx:
            self.e("s_waitcnt vmcnt(%d)" % n)
            self.known = idx
    def landed(self, tag):
        return tag in self.vm and self.vm.index(tag) <= self.known

    def build(self):
        NW = 4
        KPW = 512
        NL = KPW // 4
        NQ = KPW // 16
        NU = KPW // 32
        NS = self.NS
        self.known = -1
        e = self.e
        vKoff, vVoff, vLane = 1, 2, 3
        vQ = 4
        vACC = 8
        vACCL = 40
        vA = 44
        vF = 48
        vM, vW0, vW1, vT = 56, 57, 58, 59
        vNM = 60
        vP0, vP1 = 61, 62
        vZ = 64
        vRem = 68
        vRemO = 80
        vOa, vMa = 86, 87
        vS = 88
        vWIN = 120
        nvgpr = vWIN + 4 * NS
        assert nvgpr <= 256
        self.nvgpr = nvgpr
        slot = lambda x: vWIN + 4 * (x % NS)
        rK, rV, rQ, rW, rO = 16, 20, 24, 28, 32
        sOffK, sOffV = 36, 37
        sC, sLO, sHI = 38, 39, 40
        sT0, sT1, sT2 = 41, 42, 43
        sWave, sTick, sRole = 44, 45, 46
        sRemOff = 47
        sUse = 50
        sOwn = 53
        sCnt = 54
        sD = 12
        LDS_ROLE = 0
        LDS_CNT = 4
        LDS_M = 64
        LDS_O = 128
        OSTR = 2064
        self.lds_bytes = max(LDS_O + NW * OSTR, self.ldspad)
        cval = math.log2(math.e) / math.sqrt(128.0)
        WSZ = 0x100000 if 'stamp' not in self.abl else 0x200000
        OOB = 0x7000000

        self.nst = 0
        def stamp():
            if 'stamp' in self.abl:
                e("s_memrealtime s[%d:%d]" % (60 + 2 * self.nst, 61 + 2 * self.nst))
                self.nst += 1
        def stamp_store():
            if 'stamp' in self.abl:
                e("s_waitcnt lgkmcnt(0)")
                e("s_mov_b64 exec, 1")
                for i in range(8):
                    e("v_mov_b32 v%d, s%d" % (16 + i, 60 + 2 * i if i < self.nst else 60))
                e("s_lshl_b32 s%d, s2, 7" % sT0)
                e("s_lshl_b32 s%d, s%d, 5" % (sT1, sWave))
                e("s_add_u32 s%d, s%d, s%d" % (sT0, sT0, sT1))
                e("s_add_u32 s%d, s%d, 0x100000" % (sT0, sT0))
                e("v_mov_b32 v24, 0")
                e("buffer_store_dwordx4 v[16:19], v24, s[%d:%d], s%d offen" % (rW, rW + 3, sT0))
                e("buffer_store_dwordx4 v[20:23], v24, s[%d:%d], s%d offen offset:16" % (rW, rW + 3, sT0))
                e("s_mov_b64 exec, -1")

        stamp()
        if 'ampl' in self.abl:
            e("s_memrealtime s[60:61]")
        e("s_load_dwordx4 s[4:7], s[0:1], 0")
        e("s_load_dwordx4 s[8:11], s[0:1], 16")
        e("s_load_dwordx4 s[12:15], s[0:1], 32")
        e("s_cmp_ge_u32 s2, 256")
        e("s_cbranch_scc1 L_end")
        if 'rendet' in self.abl:
            e("s_getreg_b32 s70, hwreg(HW_REG_XCC_ID)")
            e("s_and_b32 s70, s70, 7")
            e("s_and_b32 s71, s2, 7")
            e("s_xor_b32 s70, s70, s71")
        order = ['s0', 's1', 'p0', 'p1', 'p2', 'p3', 'p4', 'p5']
        assert sorted(self.M) == sorted(order)
        if self.M != order:
            keep = sum(1 << i for i, tok in enumerate(self.M) if order[i] == tok)
            e("s_and_b32 s3, s2, 0x%x" % keep)
            for i, tok in enumerate(self.M):
                if order[i] != tok:
                    e("s_bitcmp1_b32 s2, %d" % i)
                    e("s_cselect_b32 s%d, 0x%x, 0" % (sT0, 1 << order.index(tok)))
                    e("s_or_b32 s3, s3, s%d" % sT0)
            e("s_mov_b32 s2, s3")
        e("v_and_b32 v%d, 63, v0" % vLane)
        e("v_lshrrev_b32 v%d, 6, v0" % vT)
        e("v_and_b32 v%d, 3, v0" % vW1)
        e("v_bfe_u32 v%d, v0, 2, 2" % vW0)
        e("v_bfe_u32 v%d, v0, 4, 2" % vNM)
        e("v_lshlrev_b32 v%d, 6, v%d" % (vNM, vNM))
        e("v_readfirstlane_b32 s%d, v%d" % (sWave, vT))
        e("v_lshl_add_u32 v%d, v%d, 4, v%d" % (vKoff, vW1, vNM))
        e("v_lshl_add_u32 v%d, v%d, 8, v%d" % (vKoff, vW0, vKoff))
        e("v_lshl_add_u32 v%d, v%d, 8, v%d" % (vM, vW1, vNM))
        e("v_lshl_add_u32 v%d, v%d, 4, v%d" % (vM, vW0, vM))
        e("v_lshlrev_b32 v%d, 4, v%d" % (vVoff, vLane))
        pos = {tok: 12 + i for i, tok in enumerate(self.pat)}
        contrib = {"w0": 1 << pos["w0"], "w1": 1 << pos["w1"], "s0": 1 << pos["s0"], "s1": 1 << pos["s1"]}
        for x_ in self.xors:
            a_, b_ = x_.split(">")
            contrib[a_] ^= 1 << int(b_)
        tb = [1 << pos["t%d" % i] for i in range(5)]
        if self.masks:
            contrib = {k_: self.masks[k_] for k_ in ("w0", "w1", "s0", "s1")}
            tb = [self.masks["t%d" % i] for i in range(5)]
        sBase = 55
        e("s_lshr_b32 s%d, s2, 2" % sBase)
        e("s_lshl_b32 s%d, s%d, 21" % (sBase, sBase))
        plist = []
        for i_ in range(6):
            if self.masks.get("p%d" % i_):
                contrib["p%d" % i_] = self.masks["p%d" % i_]
                assert contrib["p%d" % i_] < (1 << 21) and contrib["p%d" % i_] & 0xfff == 0
                plist.append(("p%d" % i_, 2, 2 + i_))
        for tok, src, b_ in [("s0", 2, 0), ("s1", 2, 1)] + plist + [("w0", sWave, 0), ("w1", sWave, 1)]:
            e("s_bitcmp1_b32 s%d, %d" % (src, b_))
            e("s_cselect_b32 s%d, 0x%x, 0" % (sT0, contrib[tok]))
            e("s_xor_b32 s%d, s%d, s%d" % (sBase, sBase, sT0))
        def tmask(t_):
            v_ = 0
            for i in range(5):
                if (t_ >> i) & 1:
                    v_ ^= tb[i]
            return v_
        seen = set()
        for w_ in range(4):
            for s_ in range(4):
                for t_ in range(32):
                    a_ = tmask(t_)
                    for tok, bit in (("w0", w_ & 1), ("w1", w_ >> 1), ("s0", s_ & 1), ("s1", s_ >> 1)):
                        if bit:
                            a_ ^= contrib[tok]
                    seen.add(a_)
        assert len(seen) == 512 and max(seen) < (1 << 21) and min(x_ & 0xfff for x_ in seen) == 0
        e("s_lshr_b32 s%d, s2, 2" % sT1)
        e("s_lshl_b32 s%d, s%d, 10" % (sT2, sT1))
        e("s_mov_b32 s%d, 0x8000000" % (rK + 2))
        e("s_mov_b32 s%d, 0x20000" % (rK + 3))
        e("s_mov_b32 s%d, 0x10000" % (rQ + 2))
        e("s_mov_b32 s%d, 0x20000" % (rQ + 3))
        if 'clrfirst' in self.abl:
            for r_ in range(4):
                e("v_mov_b32 v%d, 0" % (vZ + r_))
            e("s_lshl_b32 s%d, s%d, 10" % (sT0, sWave))
            e("s_lshl_b32 s%d, s2, 12" % sOwn)
            e("s_add_u32 s%d, s%d, s%d" % (sOwn, sOwn, sT0))
            e("s_mov_b32 s%d, 0x%x" % (rW + 2, WSZ))
            e("s_mov_b32 s%d, 0x20000" % (rW + 3))
        e("s_waitcnt lgkmcnt(0)")
        if 'clrfirst' in self.abl:
            e("s_mov_b32 s%d, s14" % rW)
            e("s_and_b32 s%d, s15, 0xffff" % (rW + 1))
            self.vmem("buffer_store_dwordx4 v[%d:%d], v%d, s[%d:%d], s%d offen sc1" % (vZ, vZ + 3, vVoff, rW, rW + 3, sOwn), ("clr", 3))
        e("s_mov_b32 s%d, s6" % rK)
        e("s_and_b32 s%d, s7, 0xffff" % (rK + 1))
        e("s_mov_b32 s%d, s4" % rQ)
        e("s_and_b32 s%d, s5, 0xffff" % (rQ + 1))
        gstride = 4096 * NW
        st = {"k": 0, "v": 0}
        def issue(x):
            r = slot(x)
            if x < NL:
                grp, j = divmod(x, 4)
                if j == 0 and grp:
                    e("s_xor_b32 s%d, s%d, 0x%x" % (sOffK, sBase, tmask(grp)))
                so = sOffK if grp else sBase
                self.vmem("buffer_load_dwordx4 v[%d:%d], v%d, s[%d:%d], s%d offen offset:%d%s" %
                          (r, r + 3, vKoff, rK, rK + 3, so, j * 1024, self.ld), ("ld", x))
            else:
                grp, j = divmod(x - NL, 4)
                if j == 0 and grp:
                    e("s_xor_b32 s%d, s%d, 0x%x" % (sOffV, sBase, tmask(grp)))
                so = sOffV if grp else sBase
                self.vmem("buffer_load_dwordx4 v[%d:%d], v%d, s[%d:%d], s%d offen offset:%d%s" %
                          (r, r + 3, vVoff, rV, rV + 3, so, j * 1024, self.ld), ("ld", x))
        def window(x):
            if self.tw:
                a_, wa_, b_, wb_ = self.tw
                if NL - a_ <= x < NL:
                    return wa_
                if NL <= x < NL + b_:
                    return wb_
            if self.W0 is not None and x < self.W0:
                return self.W0
            if x < self.frac * 2 * NL:
                return self.W1 + (1 if (self.mix and x > 8 and x % self.mix == 0) else 0)
            if self.W3 and x >= self.frac3 * 2 * NL:
                return self.W3
            return self.W2

        bundles = []
        D = vACC
        def mkA(q):
            def f():
                for j in range(4):
                    r = slot(4 * q + j)
                    e("v_mfma_f32_16x16x32_bf16 v[%d:%d], v[%d:%d], v[%d:%d], 0" %
                      (D + 4 * j, D + 4 * j + 3, r, r + 3, vQ, vQ + 3))
                e("s_nop 4")
            return f
        def mkB(q):
            def f():
                d = lambda j, r: D + 4 * j + r
                rot = "row_ror:12"
                e("s_nop 2")
                for (w, j0) in ((vW0, 0), (vW1, 2)):
                    e("v_add_f32_dpp v%d, v%d, v%d %s row_mask:0xf bank_mask:0x1" % (w, d(j0, 1), d(j0, 0), rot))
                    e("v_add_f32_dpp v%d, v%d, v%d %s row_mask:0xf bank_mask:0x4" % (w, d(j0, 3), d(j0, 2), rot))
                    e("v_add_f32_dpp v%d, v%d, v%d %s row_mask:0xf bank_mask:0x2" % (w, d(j0 + 1, 2), d(j0 + 1, 1), rot))
                    e("v_add_f32_dpp v%d, v%d, v%d %s row_mask:0xf bank_mask:0x8" % (w, d(j0 + 1, 0), d(j0 + 1, 3), rot))
                e("v_add_f32_dpp v%d, v%d, v%d row_ror:8 row_mask:0xf bank_mask:0x3" % (vS + q, vW0, vW0))
                e("s_nop 0")
                e("v_add_f32_dpp v%d, v%d, v%d row_ror:8 row_mask:0xf bank_mask:0xc" % (vS + q, vW1, vW1))
                if q == 0:
                    e("v_mov_b32 v%d, v%d" % (vM, vS))
                else:
                    e("v_max_f32 v%d, v%d, v%d" % (vM, vM, vS + q))
            return f
        def xlane_max(v, t):
            e("s_nop 1")
            e("v_max_f32_dpp v%d, v%d, v%d row_ror:4 row_mask:0xf bank_mask:0xf" % (v, v, v))
            e("s_nop 1")
            e("v_max_f32_dpp v%d, v%d, v%d row_ror:8 row_mask:0xf bank_mask:0xf" % (v, v, v))
            e("v_mov_b32 v%d, v%d" % (t, v))
            e("s_nop 1")
            e("v_permlane16_swap_b32 v%d, v%d" % (v, t))
            e("v_max_f32 v%d, v%d, v%d" % (v, v, t))
            e("v_mov_b32 v%d, v%d" % (t, v))
            e("s_nop 1")
            e("v_permlane32_swap_b32 v%d, v%d" % (v, t))
            e("v_max_f32 v%d, v%d, v%d" % (v, v, t))
        def trans():
            assert self.landed(("clr", 3))
            stamp()
            xlane_max(vM, vW0)
            e("v_and_b32 v%d, 15, v%d" % (vW1, vLane))
            e("v_lshlrev_b32 v%d, 2, v%d" % (vW1, vW1))
            e("s_lshl_b32 s%d, s%d, 4" % (sT0, sWave))
            e("v_add_u32 v%d, s%d, v%d" % (vW0, sT0, vW1))
            e("v_mov_b32 v%d, 1" % vT)
            e("s_mov_b64 exec, 0xf")
            e("ds_write_b32 v%d, v%d offset:%d" % (vW0, vM, LDS_M))
            e("s_mov_b64 exec, 1")
            e("ds_add_u32 v%d, v%d offset:%d" % (vZ, vT, LDS_CNT))
            e("s_mov_b64 exec, -1")
            for r in range(4):
                e("v_mov_b32 v%d, 0x3f803f80" % (vQ + r))
        def trans2():
            self.label("L_wmax")
            e("ds_read_b32 v%d, v%d offset:%d" % (vT, vZ, LDS_CNT))
            e("ds_read_b32 v%d, v%d offset:%d" % (vM, vW1, LDS_M))
            e("s_waitcnt lgkmcnt(0)")
            e("v_readfirstlane_b32 s%d, v%d" % (sT0, vT))
            e("s_cmp_lg_u32 s%d, 4" % sT0)
            e("s_cbranch_scc1 L_wmax")
            e("v_max_f32_dpp v%d, v%d, v%d row_ror:4 row_mask:0xf bank_mask:0xf" % (vM, vM, vM))
            e("s_nop 1")
            e("v_max_f32_dpp v%d, v%d, v%d row_ror:8 row_mask:0xf bank_mask:0xf" % (vM, vM, vM))
            e("v_mul_f32 v%d, s%d, v%d" % (vNM, sC, vM))
        def mkP(u):
            def f():
                e("v_fma_f32 v%d, v%d, s%d, -v%d" % (vP0, vS + 2 * u, sC, vNM))
                e("v_fma_f32 v%d, v%d, s%d, -v%d" % (vP1, vS + 2 * u + 1, sC, vNM))
                e("v_exp_f32 v%d, v%d" % (vP0, vP0))
                e("v_exp_f32 v%d, v%d" % (vP1, vP1))
                e("s_nop 0")
                e("v_cvt_pk_bf16_f32 v%d, v%d, v%d" % (vA, vP0, vP1))
                e("s_nop 1")
                e("v_mov_b32_dpp v%d, v%d row_ror:12 row_mask:0xf bank_mask:0xf" % (vA + 1, vA))
                e("v_mov_b32_dpp v%d, v%d row_ror:8 row_mask:0xf bank_mask:0xf" % (vA + 2, vA))
                e("v_mov_b32_dpp v%d, v%d row_ror:4 row_mask:0xf bank_mask:0xf" % (vA + 3, vA))
                e("s_nop 1")
                cc = "0" if u == 0 else "v[%d:%d]" % (vACCL, vACCL + 3)
                e("v_mfma_f32_16x16x32_bf16 v[%d:%d], v[%d:%d], v[%d:%d], %s" % (vACCL, vACCL + 3, vA, vA + 3, vQ, vQ + 3, cc))
            return f
        def mkC(u, half):
            base = NL + 8 * u
            def perms(i):
                F = vF + 4 * (i & 1)
                sel = sHI if (i & 1) else sLO
                for p in range(4):
                    e("v_perm_b32 v%d, v%d, v%d, s%d" % (F + p, slot(base + p + 4) + (i >> 1), slot(base + p) + (i >> 1), sel))
            def mf(i):
                F = vF + 4 * (i & 1)
                a = vACC + 4 * i
                cc = "0" if u == 0 else "v[%d:%d]" % (a, a + 3)
                e("v_mfma_f32_16x16x32_bf16 v[%d:%d], v[%d:%d], v[%d:%d], %s" % (a, a + 3, vA, vA + 3, F, F + 3, cc))
            def f():
                i0 = 4 * half
                perms(i0); perms(i0 + 1); mf(i0); perms(i0 + 2); mf(i0 + 1); perms(i0 + 3); mf(i0 + 2)
                e("s_nop 0")
                mf(i0 + 3)
            return f
        for q in range(NQ):
            bundles.append(("A%d" % q, ("ld", 4 * q + 3), list(range(4 * q, 4 * q + 4)), mkA(q)))
            bundles.append(("B%d" % q, None, [], mkB(q)))
        bundles.append(("T", None, [], trans))
        bundles.append(("T2", ("ld", NL + 12), [], trans2))
        for u in range(NU):
            bundles.append(("P%d" % u, None, [], mkP(u)))
            bundles.append(("C%d_0" % u, ("ld", NL + 8 * u + 7), [], mkC(u, 0)))
            bundles.append(("C%d_1" % u, None, list(range(NL + 8 * u, NL + 8 * u + 8)), mkC(u, 1)))

        def ev_setup():
            e("s_mov_b32 s%d, s8" % rV)
            e("s_and_b32 s%d, s9, 0xffff" % (rV + 1))
            e("s_mov_b32 s%d, 0x8000000" % (rV + 2))
            e("s_mov_b32 s%d, 0x20000" % (rV + 3))
            e("s_mov_b32 s%d, %s" % (sC, f32hex(cval)))
            e("s_mov_b32 s%d, 0x05040100" % sLO)
            e("s_mov_b32 s%d, 0x07060302" % sHI)
            e("s_mov_b32 s%d, s14" % rW)
            e("s_and_b32 s%d, s15, 0xffff" % (rW + 1))
            e("s_mov_b32 s%d, 0x%x" % (rW + 2, WSZ))
            e("s_mov_b32 s%d, 0x20000" % (rW + 3))
            e("s_mov_b32 s%d, s10" % rO)
            e("s_and_b32 s%d, s11, 0xffff" % (rO + 1))
            e("s_mov_b32 s%d, 0x10000" % (rO + 2))
            e("s_mov_b32 s%d, 0x20000" % (rO + 3))
            e("s_lshl_b32 s%d, s%d, 2" % (sT1, sT1))
            e("s_add_u32 s12, s12, s%d" % sT1)
            e("s_addc_u32 s13, s13, 0")
            e("s_lshl_b32 s%d, s%d, 10" % (sT0, sWave))
            e("s_lshl_b32 s%d, s2, 12" % sOwn)
            e("s_add_u32 s%d, s%d, s%d" % (sOwn, sOwn, sT0))
            for k in range(1, 4):
                e("s_xor_b32 s%d, s%d, %d" % (sRemOff + k - 1, sOwn, k << 12))
            e("v_and_b32 v%d, 3, v0" % vOa)
            e("v_lshlrev_b32 v%d, 9, v%d" % (vOa, vOa))
            e("v_bfe_u32 v%d, v0, 2, 4" % vMa)
            e("v_lshl_add_u32 v%d, v%d, 4, v%d" % (vOa, vMa, vOa))
            e("s_lshl_b32 s%d, s%d, 2" % (sT0, sWave))
            e("v_add_u32 v%d, s%d, v%d" % (vOa, sT0, vOa))
            e("v_mov_b32 v%d, s%d" % (vMa, sT0))
            e("s_lshl_b32 s%d, s%d, 8" % (sT0, sWave))
            e("s_add_u32 s%d, s%d, s%d" % (sT2, sT2, sT0))
            for r in range(4):
                e("v_mov_b32 v%d, 0" % (vZ + r))
            if 'noclr' in self.abl:
                e("s_mov_b32 s%d, 0x%x" % (sT0, OOB))
            else:
                e("s_mov_b32 s%d, s%d" % (sT0, sOwn))
            if 'clrfirst' not in self.abl and 'clrlate' not in self.abl:
              self.vmem("buffer_store_dwordx4 v[%d:%d], v%d, s[%d:%d], s%d offen%s" %
                      (vZ, vZ + 3, vVoff, rW, rW + 3, sT0, " sc1 nt" if 'clrnt' in self.abl else (" sc0 sc1" if 'clrsys' in self.abl else " sc1")), ("clr", 3))
            if 'touch' in self.abl:
                e("v_lshlrev_b32 v63, 2, v%d" % vLane)
                self.vmem("buffer_load_dword v63, v63, s[%d:%d], s%d offen%s" % (rO, rO + 3, sT2, " sc1" if 'touchsc' in self.abl else ""), ("touch", 0))
            e("ds_write_b64 v%d, v[%d:%d] offset:%d" % (vZ, vZ, vZ + 1, LDS_ROLE))
            e("s_waitcnt lgkmcnt(0)")
            e("s_barrier")
        def ev_ticket():
            if 'notick' in self.abl:
                e('s_mov_b32 s%d, 0' % sTick)
                return
            assert self.landed(("clr", 3))
            e("s_cmp_lg_u32 s%d, 0" % sWave)
            e("s_cbranch_scc1 L_notick")
            e("s_mov_b32 s%d, 1" % sTick)
            e("s_atomic_add s%d, s[12:13], 0 glc" % sTick)
            self.label("L_notick")
        def ev_role():
            e("s_cmp_lg_u32 s%d, 0" % sWave)
            e("s_cbranch_scc1 L_norole")
            e("s_waitcnt lgkmcnt(0)")
            e("s_add_u32 s%d, s%d, 1" % (sTick, sTick))
            e("v_mov_b32 v%d, s%d" % (vT, sTick))
            e("ds_write_b32 v%d, v%d offset:%d" % (vZ, vT, LDS_ROLE))
            self.label("L_norole")
        def rem_load(k, so, track=True):
            t2 = "buffer_load_dwordx4 v[%d:%d], v%d, s[%d:%d], s%d offen%s" % (vRem + 4 * k, vRem + 4 * k + 3, vVoff, rW, rW + 3, so, " sc0 sc1" if 'ldsys' in self.abl else " sc1")
            if track:
                self.vmem(t2, ("rem", k, len(self.vm)))
            else:
                e(t2)
        def rem_loads():
            for k in range(3):
                rem_load(k, sUse + k)
        def ev_prefetch_a():
            e("ds_read_b32 v%d, v%d offset:%d" % (vT, vZ, LDS_ROLE))
        def ev_prefetch_b():
            e("s_waitcnt lgkmcnt(0)")
            e("v_readfirstlane_b32 s%d, v%d" % (sRole, vT))
            e("s_cmp_eq_u32 s%d, 4" % sRole)
            for k in range(3):
                e("s_cselect_b32 s%d, s%d, 0x%x" % (sUse + k, sRemOff + k, OOB))
            rem_loads()
        TOT = 2 * NL
        def ev_clr():
            self.vmem("buffer_store_dwordx4 v[%d:%d], v%d, s[%d:%d], s%d offen sc1" % (vZ, vZ + 3, vVoff, rW, rW + 3, sOwn), ("clr", 3))
        events = {int(self.tick * TOT): ev_ticket, int(self.role * TOT): ev_role}
        if 'clrlate' in self.abl:
            events[100] = ev_clr

        self.vmem("buffer_load_dwordx4 v[%d:%d], v%d, s[%d:%d], s%d offen" % (vQ, vQ + 3, vM, rQ, rQ + 3, sT2), "q")
        freed = set()
        bi = 0
        def emit_bundle(force):
            nonlocal bi
            name, need, frees, fn = bundles[bi]
            if need is not None and not self.landed(need):
                if not force:
                    return False
                self.wait_vm(need)
            self.c(name)
            if not ('nocomp' in self.abl and name[0] != 'T'):
                fn()
            freed.update(frees)
            bi += 1
            return True
        first = window(0)
        for x in range(TOT):
            while x >= NS and (x - NS) not in freed:
                emit_bundle(True)
            w = window(x)
            if x - w >= 0:
                self.wait_vm(("ld", x - w))
                if x - w == 3:
                    stamp()
            issue(x)
            if x == first - 1:
                ev_setup()
            if x in events:
                events[x]()
            n = 0
            while bi < len(bundles) and n < self.per_gap and emit_bundle(False):
                n += 1
        while bi < len(bundles):
            if bi == len(bundles) - 2:
                self.wait_vm(bundles[bi][1])
                ev_prefetch_a()
            emit_bundle(True)
            if bi == len(bundles) - self.pf:
                ev_prefetch_b()
        stamp()
        if 'noepi' in self.abl:
            e('s_waitcnt vmcnt(0)')
            e('s_endpgm')
        e("s_mul_i32 s%d, s%d, %d" % (sT0, sWave, OSTR))
        e("v_add_u32 v%d, s%d, v%d" % (vW0, sT0, vVoff))
        X = 44
        e("v_readlane_b32 s%d, v%d, s%d" % (sT1, vNM, sWave))
        e("s_mov_b64 exec, 1")
        e("ds_write_b128 v%d, v[%d:%d] offset:%d" % (vW0, vACCL, vACCL + 3, LDS_O + 2048))
        e("s_mov_b64 exec, 0xffff")
        for i in range(8):
            if i == 4:
                e("s_nop 1")
            e("ds_write_b128 v%d, v[%d:%d] offset:%d" % (vW0, vACC + 4 * i, vACC + 4 * i + 3, LDS_O + i * 256))
        e("s_mov_b64 exec, -1")
        e("v_mov_b32 v%d, s%d" % (X + 2, sT1))
        e("v_lshlrev_b32 v%d, 2, v%d" % (vW1, vLane))
        e("s_waitcnt lgkmcnt(0)")
        e("s_barrier")
        stamp()
        R = vS
        ll = lambda w: R + w
        oo = lambda w: R + 8 + 2 * w
        for w in range(4):
            for h in range(2):
                e("ds_read_b32 v%d, v%d offset:%d" % (oo(w) + h, vOa, LDS_O + w * OSTR + 256 * h))
        for w in range(4):
            e("ds_read_b32 v%d, v%d offset:%d" % (ll(w), vMa, LDS_O + w * OSTR + 2048))
        e("ds_read_b32 v%d, v%d offset:%d" % (vT, vZ, LDS_ROLE))
        e("s_waitcnt lgkmcnt(5)")
        for h in range(2):
            e("v_add_f32 v%d, v%d, v%d" % (X + h, oo(0) + h, oo(1) + h))
            e("v_add_f32 v%d, v%d, v%d" % (oo(2) + h, oo(2) + h, oo(3) + h))
        for h in range(2):
            e("v_add_f32 v%d, v%d, v%d" % (X + h, X + h, oo(2) + h))
        e("s_waitcnt lgkmcnt(0)")
        e("v_readfirstlane_b32 s%d, v%d" % (sRole, vT))
        e("v_add_f32 v%d, v%d, v%d" % (X + 3, ll(0), ll(1)))
        e("v_add_f32 v%d, v%d, v%d" % (ll(2), ll(2), ll(3)))
        e("v_add_f32 v%d, v%d, v%d" % (X + 3, X + 3, ll(2)))
        if 'nopub' in self.abl:
            e('s_endpgm')
        for r in range(4):
            e("v_or_b32 v%d, 1, v%d" % (X + r, X + r))
        e("s_cmp_eq_u32 s%d, 4" % sRole)
        e("s_cbranch_scc1 L_comb")
        e("buffer_store_dwordx4 v[%d:%d], v%d, s[%d:%d], s%d offen%s" % (X, X + 3, vVoff, rW, rW + 3, sOwn, " sc0 sc1" if 'pubsys' in self.abl else " sc1"))
        if 'stamp' in self.abl:
            sv = self.nst
            stamp(); stamp()
            stamp_store()
            self.nst = sv
        e("s_endpgm")
        self.label("L_comb")
        e("s_mov_b32 s%d, 0" % sCnt)
        T3 = 16
        self.label("L_chk")
        e("s_waitcnt vmcnt(0)")
        for k in range(3):
            e("v_and_b32 v%d, v%d, v%d" % (T3 + k, vRem + 4 * k, vRem + 4 * k + 1))
        for r in range(2, 4):
            for k in range(3):
                e("v_and_b32 v%d, v%d, v%d" % (T3 + k, T3 + k, vRem + 4 * k + r))
        e("v_and_b32 v%d, v%d, v%d" % (vT, T3, T3 + 1))
        e("v_and_b32 v%d, v%d, v%d" % (vT, vT, T3 + 2))
        e("v_and_b32 v%d, 1, v%d" % (vT, vT))
        e("v_cmp_ne_u32 vcc, 1, v%d" % vT)
        e("s_cbranch_vccz L_ok")
        if 'nopoll' in self.abl:
            e("s_branch L_ok")
        e("s_add_u32 s%d, s%d, 1" % (sCnt, sCnt))
        e("s_cmp_gt_u32 s%d, 0x100000" % sCnt)
        e("s_cbranch_scc1 L_ok")
        for k in range(3):
            e("v_and_b32 v%d, 1, v%d" % (vT, T3 + k))
            e("v_cmp_ne_u32 vcc, 1, v%d" % vT)
            e("s_cbranch_vccz L_skip%d" % k)
            rem_load(k, sRemOff + k, track=False)
            self.label("L_skip%d" % k)
        e("s_branch L_chk")
        self.label("L_ok")
        stamp()
        Rs = [X] + [vRem + 4 * k for k in range(3)]
        Mx, Ls, Oa = 16, 18, 20
        e("v_max3_f32 v%d, v%d, v%d, v%d" % (Mx, Rs[0] + 2, Rs[1] + 2, Rs[2] + 2))
        e("v_max_f32 v%d, v%d, v%d" % (Mx, Mx, Rs[3] + 2))
        for k in range(4):
            e("v_sub_f32 v%d, v%d, v%d" % (Rs[k] + 2, Rs[k] + 2, Mx))
        for k in range(4):
            e("v_exp_f32 v%d, v%d" % (Rs[k] + 2, Rs[k] + 2))
        for k in range(4):
            e("v_mul_f32 v%d, v%d, v%d" % (Rs[k] + 3, Rs[k] + 2, Rs[k] + 3))
        for k in range(4):
            for h in range(2):
                e("v_mul_f32 v%d, v%d, v%d" % (Rs[k] + h, Rs[k] + 2, Rs[k] + h))
        e("v_add_f32 v%d, v%d, v%d" % (Ls, Rs[0] + 3, Rs[1] + 3))
        e("v_add_f32 v%d, v%d, v%d" % (Ls + 1, Rs[2] + 3, Rs[3] + 3))
        e("v_add_f32 v%d, v%d, v%d" % (Ls, Ls, Ls + 1))
        e("v_rcp_f32 v%d, v%d" % (Ls, Ls))
        for h in range(2):
            e("v_add_f32 v%d, v%d, v%d" % (Oa + h, Rs[0] + h, Rs[1] + h))
            e("v_add_f32 v%d, v%d, v%d" % (Rs[2] + h, Rs[2] + h, Rs[3] + h))
        for h in range(2):
            e("v_add_f32 v%d, v%d, v%d" % (Oa + h, Oa + h, Rs[2] + h))
        for h in range(2):
            e("v_mul_f32 v%d, v%d, v%d" % (Oa + h, Oa + h, Ls))
        e("v_cvt_pk_bf16_f32 v%d, v%d, v%d" % (Oa, Oa, Oa + 1))
        if 'noout' not in self.abl:
            e("buffer_store_dword v%d, v%d, s[%d:%d], s%d offen%s" % (Oa, vW1, rO, rO + 3, sT2, self.ost))
        if 'stamp' in self.abl:
            e("s_waitcnt vmcnt(0)")
            stamp()
            e("s_mov_b32 s%d, s%d" % (60 + 2 * 7, sCnt))
            self.nst = 8
            stamp_store()
        if 'ampl' in self.abl:
            e("s_waitcnt vmcnt(0)")
            e("s_memrealtime s[62:63]")
            e("s_waitcnt lgkmcnt(0)")
            e("s_sub_u32 s64, s62, s60")
            e("s_max_u32 s64, s64, 3400")
            e("s_sub_u32 s64, s64, 3400")
            e("s_min_u32 s64, s64, 5000")
            e("s_lshl_b32 s64, s64, 3")
            if 'rendet' in self.abl:
                e("s_cmp_eq_u32 s70, 0")
                e("s_cselect_b32 s64, 0, 3000")
            self.label("L_amp")
            e("s_memrealtime s[66:67]")
            e("s_waitcnt lgkmcnt(0)")
            e("s_sub_u32 s65, s66, s62")
            e("s_cmp_lt_u32 s65, s64")
            e("s_cbranch_scc1 L_amp")
        self.label("L_end")
        e("s_endpgm")

    def text(self):
        self.build()
        hdr = open("standalone__gqa_softmax__sampling.s.ref").read().split("; @launch")[0]
        out = hdr
        out += "; @launch grid=(256,1,1) block=(256,1,1) lds=%d\n" % (self.lds_bytes)
        out += "; ---------------------------------------------------------------------------------------------\n;  loads   : nt, paced with counted vmcnt (5 KiB in flight per wave, 8 KiB for the last 30 %).\n; ---------------------------------------------------------------------------------------------\n"
        out += '.amdgcn_target "amdgcn-amd-amdhsa--gfx950"\n.text\n'
        k = self.name + "_kernel"
        out += ".globl %s\n.p2align 8\n.type %s,@function\n%s:\n" % (k, k, k)
        out += "\n".join(self.lines) + "\n"
        acc = (self.nvgpr + 3) // 4 * 4
        out += """.section .rodata,"a"
.p2align 6
.amdhsa_kernel %s
  .amdhsa_next_free_vgpr %d
  .amdhsa_next_free_sgpr %d
  .amdhsa_accum_offset %d
  .amdhsa_group_segment_fixed_size 0
  .amdhsa_kernarg_size 48
  .amdhsa_user_sgpr_count 2
  .amdhsa_user_sgpr_kernarg_segment_ptr 1
  .amdhsa_system_sgpr_workgroup_id_x 1
.end_amdhsa_kernel
""" % (k, self.nvgpr, 80 if ("stamp" in self.abl or "ampl" in self.abl) else 56, acc)
        return out

if __name__ == "__main__":
    ap = argparse.ArgumentParser()
    ap.add_argument("--w1", type=int, default=5)
    ap.add_argument("--w2", type=int, default=8)
    ap.add_argument("--w0", type=int, default=None)
    ap.add_argument("--frac", type=float, default=0.7)
    ap.add_argument("--ns", type=int, default=24)
    ap.add_argument("--abl", default="")
    ap.add_argument("--tick", type=float, default=0.96)
    ap.add_argument("--role", type=float, default=0.99)
    ap.add_argument("--pg", type=int, default=1)
    ap.add_argument("--pf", type=int, default=0)
    ap.add_argument("--mix", type=int, default=0)
    ap.add_argument("--ost", default=" sc1")
    ap.add_argument("--ldspad", type=int, default=0)
    ap.add_argument("--w3", type=int, default=0)
    ap.add_argument("--xr", type=int, default=0)
    ap.add_argument("--pat", default="w0,w1,t4,t0,t1,t2,t3,s0,s1")
    ap.add_argument("--xors", default="w0>14,s0>12,s1>13")
    ap.add_argument("--M", default="s0,s1,p0,p1,p2,p3,p4,p5")
    ap.add_argument("--masks", default="")
    ap.add_argument("--tw", default="")
    ap.add_argument("--ld", default=" nt")
    ap.add_argument("--frac3", type=float, default=1.0)
    ap.add_argument("-o", default="standalone__gqa_softmax__sampling.s")
    a = ap.parse_args()
    g = Gen(W1=a.w1, W2=a.w2, frac=a.frac, NS=a.ns, abl=a.abl, tick=a.tick, role=a.role, W0=a.w0, per_gap=a.pg, pf=a.pf, mix=a.mix, ost=a.ost, ldspad=a.ldspad, W3=a.w3, frac3=a.frac3, xr=a.xr, pat=a.pat, xors=a.xors, M=a.M, masks=a.masks, tw=a.tw, ld=a.ld)
    open(a.o, "w").write(g.text())
    print("vgprs", g.nvgpr, "lds", g.lds_bytes, "lines", len(g.lines))
```
